```python
import torch

def _softmax(x, axis=-1):
    return torch.softmax(x, dim=axis)
def _gelu(x):
    return torch.nn.functional.gelu(x, approximate="tanh")
def _silu(x):
    return torch.nn.functional.silu(x)
def _sigmoid(x):
    return torch.sigmoid(x)
def _layernorm(x, axis=-1, eps=1e-5):
    m = x.mean(dim=axis, keepdim=True)
    v = x.var(dim=axis, keepdim=True, unbiased=False)
    return (x - m) / torch.sqrt(v + eps)
def _scatter_add(tgt, idx, src, axis=0):
    return tgt.clone().index_add_(axis, idx, src)
def _segment_sum(src, seg, n):
    out = torch.zeros((n,) + src.shape[1:], dtype=src.dtype)
    return out.index_add_(0, seg, src)
def _pad(x, pw):
    flat = tuple(v for pair in reversed(pw) for v in pair)
    return torch.nn.functional.pad(x, flat)

kernel_name = 'gated_mix__ssm_conv_s4d__spectral_gfnet__prompt'

def setup_inputs():

    _w = (lambda a: (lambda t: t.to(torch.bfloat16) if t.is_floating_point() else t)(torch.as_tensor(a)))
    def _A_setup():
        Bsz, L, D, N = 1, 2048, 1024, 128
        return {
            "u": _w((lambda *s: torch.randn(*s, dtype=torch.bfloat16) * 0.05)(Bsz, L, D)),
            "log_A_real": _w((lambda *s: torch.randn(*s, dtype=torch.bfloat16) * 6.4)(D, N) * 0.5),
            "A_imag": _w((lambda *s: torch.randn(*s, dtype=torch.bfloat16) * 0.05)(D, N) * 3.14),
            "C_real": _w((lambda *s: torch.randn(*s, dtype=torch.bfloat16) * 0.05)(D, N) / N ** 0.5),
            "C_imag": _w((lambda *s: torch.randn(*s, dtype=torch.bfloat16) * 0.05)(D, N) / N ** 0.5),
            "log_dt": _w((lambda *s: torch.randn(*s, dtype=torch.bfloat16) * 0.05)(D) * 0.5 - 4.0),
            "D_skip": _w((lambda *s: torch.randn(*s, dtype=torch.bfloat16) * 0.05)(D)),
        }
    _A_in = _A_setup()

    def _B_setup():
        B, S, D = 1, 2048, 1024
        Df = D // 2 + 1
        return {
            "x": _w((lambda *s: torch.randn(*s, dtype=torch.bfloat16) * 0.05)(B, S, D)),
            "w_r": _w((lambda *s: torch.randn(*s, dtype=torch.bfloat16) * 0.8)(S, Df) * 0.02),
            "w_i": _w((lambda *s: torch.randn(*s, dtype=torch.bfloat16) * 0.8)(S, Df) * 0.02),
        }
    _B_in = _B_setup()

    return {
        "A_u": _A_in["u"],
        "A_log_A_real": _A_in["log_A_real"],
        "A_A_imag": _A_in["A_imag"],
        "A_C_real": _A_in["C_real"],
        "A_C_imag": _A_in["C_imag"],
        "A_log_dt": _A_in["log_dt"],
        "A_D_skip": _A_in["D_skip"],
        "B_x": _B_in["x"],
        "B_w_r": _B_in["w_r"],
        "B_w_i": _B_in["w_i"],
        "gate_w": _w((lambda *s: torch.randn(*s, dtype=torch.bfloat16) * 0.05)(1024) * 16.0),
    }

def reference(A_u, A_log_A_real, A_A_imag, A_C_real, A_C_imag, A_log_dt, A_D_skip, B_x, B_w_r, B_w_i, gate_w):
    def _A_ref(u, log_A_real, A_imag, C_real, C_imag, log_dt, D_skip):
        L = u.shape[1]
        dt = torch.exp(log_dt)
        A = -torch.exp(log_A_real) + 1j * A_imag
        C = (C_real + 1j * C_imag) * dt[:, None]
        pos = (lambda x, dt: x.to(dt))(torch.arange(L), log_dt.dtype)
        P = torch.exp((A * dt[:, None])[:, :, None] * pos[None, None, :])
        K = 2.0 * torch.einsum("dn,dnl->dl", C, P).real
        L2 = 2 * L
        u_t = (lambda x, *d: x.permute(*d))(u, 0, 2, 1)
        Kf = (lambda x, *a, **k: torch.fft.rfft(x.float(), *a, **k))(K, L2)
        Uf = (lambda x, *a, **k: torch.fft.rfft(x.float(), *a, **k))(u_t, L2)
        y = (lambda x, *a, **k: torch.fft.irfft(x, *a, **k).to(torch.bfloat16))(Uf * Kf[None, :, :], L2)[:, :, :L]
        y = (lambda x, *d: x.permute(*d))(y, 0, 2, 1)
        return y + u * D_skip[None, None, :]

    def _B_ref(x, w_r, w_i):
        B, S, D = x.shape
        X = (lambda x, axes=(-2,-1): torch.fft.rfft2(x.float(), dim=axes))(x, axes=(-2, -1))
        W = w_r + 1j * w_i
        X = X * W
        y = (lambda x, s, axes=(-2,-1): torch.fft.irfft2(x, s=s, dim=axes).to(torch.bfloat16))(X, (S, D), axes=(-2, -1))
        return y

    x = A_u
    g = _sigmoid((x * gate_w).sum(-1, keepdims=True))
    a = _A_ref(x, A_log_A_real, A_A_imag, A_C_real, A_C_imag, A_log_dt, A_D_skip)
    b = _B_ref(x, B_w_r, B_w_i)
    return g * a + (1 - g) * b
```

```python
import re, struct

def f2u(x):
    return struct.unpack("<I", struct.pack("<f", x))[0]

def lit(x):
    inl = {0.0: "0", 0.5: "0.5", -0.5: "-0.5", 1.0: "1.0", -1.0: "-1.0", 2.0: "2.0", -2.0: "-2.0", 4.0: "4.0", -4.0: "-4.0"}
    if x in inl:
        return inl[x]
    return hex(f2u(x))

def v(n, cnt=1):
    assert 0 <= n and n + cnt <= 256, (n, cnt)
    if cnt == 1:
        return f"v{n}"
    assert n % 2 == 0, (n, cnt)
    return f"v[{n}:{n+cnt-1}]"

def s(n, cnt=1):
    if cnt == 1:
        return f"s{n}"
    return f"s[{n}:{n+cnt-1}]"

_REG = re.compile(r"^(-|abs\()?\s*([vs])(?:(\d+)|\[(\d+):(\d+)\])\)?$")

def regs_of(tok):
    tok = tok.strip()
    if tok == "vcc":
        return {("s", 106), ("s", 107)}
    if tok == "exec":
        return {("s", 126), ("s", 127)}
    if tok == "m0":
        return {("s", 124)}
    m = _REG.match(tok)
    if not m:
        return set()
    k = m.group(2)
    if m.group(3) is not None:
        return {(k, int(m.group(3)))}
    return {(k, i) for i in range(int(m.group(4)), int(m.group(5)) + 1)}

TRANS = ("v_exp_f32", "v_log_f32", "v_rcp_f32", "v_rsq_f32", "v_sqrt_f32", "v_sin_f32", "v_cos_f32")

class Ins:
    __slots__ = ("op", "cls", "dst", "src", "a", "b", "c", "passes", "dpp", "wide_store", "data")
    def __init__(self, text):
        t = text.strip()
        parts = t.split(None, 1)
        op = parts[0]
        rest = parts[1] if len(parts) > 1 else ""
        toks = []
        depth = 0; cur = ""
        for ch in rest:
            if ch in "[(": depth += 1
            if ch in "])": depth -= 1
            if ch == "," and depth == 0:
                toks.append(cur); cur = ""
            else:
                cur += ch
        if cur.strip():
            toks.append(cur)
        if toks:
            last = toks[-1].strip().split(None, 1)
            toks[-1] = last[0]
            mods = last[1] if len(last) > 1 else ""
        else:
            mods = ""
        R = [regs_of(x) for x in toks]
        base = op.replace("_e32", "").replace("_e64", "").replace("_dpp", "")
        self.op = base
        self.dst = set(); self.src = set(); self.a = set(); self.b = set(); self.c = set()
        self.passes = 0; self.dpp = ("_dpp" in op) or ("row_" in mods) or ("quad_perm" in mods)
        self.wide_store = False; self.data = set()
        U = lambda l: set().union(*l) if l else set()
        if base.startswith("v_mfma"):
            self.cls = "mfma"
            self.dst = R[0]; self.a = R[1]; self.b = R[2]; self.c = R[3]
            self.src = R[1] | R[2] | R[3]
            self.passes = 8 if "32x32" in base else 4
        elif base.startswith("v_"):
            self.cls = "trans" if base in TRANS else ("dot" if base.startswith("v_dot") else "valu")
            if base in ("v_swap_b32", "v_permlane32_swap_b32", "v_permlane16_swap_b32"):
                self.dst = R[0] | R[1]; self.src = R[0] | R[1]
            elif base.startswith("v_cmp"):
                self.dst = R[0]; self.src = U(R[1:])
            elif base in ("v_add_co_u32", "v_sub_co_u32", "v_addc_co_u32"):
                self.dst = R[0] | R[1]; self.src = U(R[2:])
            else:
                self.dst = R[0]; self.src = U(R[1:])
                if base in ("v_fmac_f32", "v_dot2c_f32_bf16", "v_writelane_b32") or self.dpp:
                    self.src |= R[0]
        elif base.startswith("ds_"):
            self.cls = "ds"
            if "read" in base or "bpermute" in base:
                self.dst = R[0]; self.src = U(R[1:])
            else:
                self.src = U(R)
        elif base.startswith("buffer_") or base.startswith("global_"):
            self.cls = "vmem"
            if "load" in base:
                self.dst = R[0]; self.src = U(R[1:])
            else:
                self.src = U(R)
                if "x4" in base or "x3" in base:
                    self.wide_store = True
                    self.data = R[0] if base.startswith("buffer_") else R[1]
        else:
            self.cls = "salu"
            if base.startswith("s_cmp") or base.startswith("s_cbranch") or base in ("s_waitcnt", "s_nop", "s_barrier", "s_branch", "s_endpgm", "s_setprio", "s_sleep") or base.startswith("s_bitcmp"):
                self.src = U(R)
            else:
                self.dst = R[0] if R else set(); self.src = U(R[1:])
                if "saveexec" in base:
                    self.dst |= regs_of("exec")

def VV(x):
    return {r for r in x if r[0] == "v"}
def SS(x):
    return {r for r in x if r[0] == "s"}

def need(p, c):
    n = 0
    pv = p.cls in ("valu", "trans", "dot")
    cv = c.cls in ("valu", "trans", "dot")
    if pv:
        d = VV(p.dst)
        if c.cls == "mfma" and d & c.src:
            n = max(n, 2 if p.cls != "dot" else 3)
        if c.op.startswith("v_permlane") and d & c.src:
            n = max(n, 2)
        if c.op in ("v_readlane_b32", "v_readfirstlane_b32") and d & c.src:
            n = max(n, 1)
        if cv and c.dpp and d & c.src:
            n = max(n, 2)
        if p.cls == "trans" and (cv and c.cls != "trans" or c.cls in ("ds", "vmem")) and d & c.src:
            n = max(n, 1)
        if p.cls == "trans" and c.cls == "trans" and d & c.src:
            n = max(n, 1)
        if p.cls == "dot" and (d & (c.src | c.dst)):
            if not (c.op == p.op and d == VV(c.dst)):
                n = max(n, 3)
        ds_ = SS(p.dst)
        if ds_:
            if cv and ds_ & c.src:
                n = max(n, 4 if c.op in ("v_readlane_b32", "v_writelane_b32") else 2)
            if c.cls == "vmem" and ds_ & c.src:
                n = max(n, 5)
            if c.cls == "salu" and ds_ & c.src:
                n = max(n, 1)
            if ds_ & regs_of("exec"):
                if c.cls == "mfma": n = max(n, 4)
                if c.dpp: n = max(n, 5)
    if p.cls == "mfma":
        P = p.passes
        d = p.dst
        if c.cls == "mfma":
            if d & (c.a | c.b):
                n = max(n, {4: 8, 8: 12}[P])
            if d & c.c:
                if not (d == c.c and c.passes == P):
                    n = max(n, {4: 6, 8: 10}[P])
            elif d & c.dst:
                n = max(n, {4: 6, 8: 10}[P])
        else:
            if d & (c.src | c.dst):
                n = max(n, {4: 8, 8: 12}[P])
            if cv and p.c & c.dst:
                n = max(n, {4: 3, 8: 7}[P])
    if p.wide_store and p.data & c.dst:
        n = max(n, 2)
    return n

class Asm:
    def __init__(self):
        self.lines = []
        self.hist = []
        self.pending = {}
        self.nops = 0
        self.count = 0
    def raw(self, t):
        self.lines.append(t)
    def _age(self, k):
        for h in self.hist:
            h[1] += k
        self.hist = [h for h in self.hist if h[1] < 20]
    def __call__(self, text):
        for t in text.split("\n"):
            t = t.split(";")[0].strip()
            if not t:
                continue
            self._one(t)
    def _one(self, t):
        if t.endswith(":"):
            lab = t[:-1]
            for snap in self.pending.pop(lab, []):
                self.hist += [[i, a] for i, a in snap]
            self.lines.append(t)
            return
        ins = Ins(t)
        if ins.op == "s_nop":
            k = int(t.split()[1]) + 1
            self.lines.append("    " + t); self._age(k); self.count += 1
            return
        n = 0
        for p, age in self.hist:
            n = max(n, need(p, ins) - age)
        while n > 0:
            k = min(n, 16)
            self.lines.append(f"    s_nop {k-1}")
            self._age(k); n -= k; self.nops += 1; self.count += 1
        self.lines.append("    " + t)
        self.count += 1
        self._age(1)
        self.hist.append([ins, 0])
        if ins.op.startswith("s_cbranch") or ins.op == "s_branch":
            lab = t.split()[1]
            self.pending.setdefault(lab, []).append([(i, a) for i, a in self.hist])
            if ins.op == "s_branch":
                self.hist = []
        if ins.op == "s_endpgm":
            self.hist = []
    def text(self):
        return "\n".join(self.lines) + "\n"

def interleave(*streams):
    streams = [list(x) for x in streams if x]
    tot = [len(x) for x in streams]
    pos = [0] * len(streams)
    out = []
    while True:
        best = None
        for i, x in enumerate(streams):
            if pos[i] < tot[i]:
                f = (pos[i] + 0.5) / tot[i]
                if best is None or f < best[0]:
                    best = (f, i)
        if best is None:
            break
        i = best[1]
        out.append(streams[i][pos[i]]); pos[i] += 1
    return out
```

```python
import sys, os, math
sys.path.insert(0, os.path.dirname(os.path.abspath(__file__)))
from asmlib import Asm, v, s, lit, interleave

KNAME = "gated_mix__ssm_conv_s4d__spectral_gfnet__prompt_kernel"
MB = 1 << 20
WS_UT, WS_Y1, WS_Y2, WS_YA = 1 * MB, 5 * MB, 9 * MB, 13 * MB
WS_Y1S, WS_Y2S = 17 * MB, 17 * MB + 65536
WS_STAMP = 18 * MB
WS_BYTES = 268435456
LDS_BYTES = 67584
LOG2E = 1.4426950408889634
TAGM = 0x00010001

class Cfg:
    stamps = False
    pk_b1 = True
    pk_b2 = True
    pk_b3 = True
    prio_b = 2
    prio_a = 0
    retry_sleep = 2
    w_early = True
    spin_max = 0x8000

sX, sLAR, sAIM, sCRE, sCIM, sLDT, sDSK = 8, 10, 12, 14, 16, 18, 20
sWRp, sWIp, sGWp, sOUTp, sDBG, sWSp = 24, 26, 28, 30, 32, 34
SX, SWS, SWR, SWI, SOUT = 36, 40, 44, 48, 52
sW, sTV, sNM, sTW = 56, 57, 58, 59
sS2, sKAP, sJ, sK1, sNEG, sSPEC = 60, 61, 62, 63, 64, 65
sT0, sT1, sT2, sT3 = 66, 67, 68, 69
sMLO, sMHI = 70, 72
sSPIN = 74
sSELLO, sSELHI = 75, 76
sB0, sB1 = 77, 78
sPC = 80
sSTAMP = 82

MF32 = "v_mfma_f32_32x32x16_bf16"
MF16 = "v_mfma_f32_16x16x32_bf16"

def mf32(d, a, b, c=None):
    return f"{MF32} {v(d,16)}, {v(a,4)}, {v(b,4)}, {v(d,16) if c is None else c}"
def mf16(d, a, b, c=None):
    return f"{MF16} {v(d,4)}, {v(a,4)}, {v(b,4)}, {v(d,4) if c is None else c}"
def cvt(d, lo, hi, nlo=False, nhi=False):
    f = lambda r, n: (("-" if n else "") + v(r)) if isinstance(r, int) else r
    return f"v_cvt_pk_bf16_f32 {v(d)}, {f(lo,nlo)}, {f(hi,nhi)}"
def fmak(d, a, k, c):
    if k == 0: return f"v_mov_b32 {v(d)}, {v(c)}"
    if k == 1: return f"v_add_f32 {v(d)}, {v(a)}, {v(c)}"
    return f"v_fmamk_f32 {v(d)}, {v(a)}, {hex_f(k)}, {v(c)}"
def hex_f(x):
    import struct
    return hex(struct.unpack("<I", struct.pack("<f", x))[0])
def tag(d, x):
    return f"v_and_or_b32 {v(d)}, {v(x)}, {s(sNM)}, {v(VTV)}"

VTV = 9

class Gen:
    def __init__(self, cfg):
        self.c = cfg
        self.a = Asm()
        self.nstamp = 0
        self.uid = 0
    def E(self, *xs):
        for x in xs:
            if isinstance(x, (list, tuple)):
                self.E(*x)
            else:
                self.a(x)
    def stamp(self, i):
        if self.c.stamps:
            self.E(f"s_memrealtime {s(sSTAMP+2*i,2)}", "s_waitcnt lgkmcnt(0)")
    def stamp_out(self, n):
        if not self.c.stamps: return
        E = self.E
        E("s_waitcnt vmcnt(0) lgkmcnt(0)")
        for i in range(n):
            E(f"v_mov_b32 {v(10+i)}, {s(sSTAMP+2*i)}")
        E(f"v_mov_b32 {v(10+n)}, {s(sSPIN)}")
        E(f"s_lshl_b32 {s(sT0)}, s2, 8", f"s_lshl_b32 {s(sT1)}, {s(sW)}, 6", f"s_add_u32 {s(sT0)}, {s(sT0)}, {s(sT1)}",
          f"s_add_u32 {s(sT0)}, {s(sT0)}, {WS_STAMP}", "s_mov_b64 exec, 1")
        for i in range(3):
            E(f"buffer_store_dwordx4 {v(10+4*i,4)}, off, {s(SWS,4)}, {s(sT0)} offset:{16*i}")
        E("s_mov_b64 exec, -1")
    def srd(self, d, p, nbytes):
        self.E(f"s_mov_b32 {s(d)}, {s(p)}", f"s_mov_b32 {s(d+1)}, {s(p+1)}", f"s_mov_b32 {s(d+2)}, {nbytes}", f"s_mov_b32 {s(d+3)}, 0x00020000")
    def label(self, base):
        self.uid += 1
        return f"L{base}_{self.uid}"

    def poll(self, loads, chk, words=(), tmp=2, pre=()):
        E = self.E
        L = self.label("poll"); D = self.label("ok")
        E(f"{L}:")
        E(loads)
        E(pre)
        E("s_waitcnt vmcnt(0)")
        E(f"v_xor_b32 {v(tmp)}, {s(sTV)}, {v(chk[0])}")
        for r in chk[1:]:
            E(f"v_bitop3_b32 {v(tmp)}, {v(tmp)}, {v(r)}, {s(sTV)} bitop3:0xf6")
        E(f"v_and_b32 {v(tmp)}, {TAGM}, {v(tmp)}")
        for r in words:
            E(f"v_bitop3_b32 {v(tmp)}, {v(tmp)}, {v(r)}, {s(sTW)} bitop3:0xf6")
        E(f"v_cmp_ne_u32 vcc, 0, {v(tmp)}")
        E(f"s_cbranch_vccz {D}")
        if self.c.retry_sleep:
            E(f"s_sleep {self.c.retry_sleep}")
        E(f"s_add_u32 {s(sSPIN)}, {s(sSPIN)}, 1", f"s_cmp_lt_u32 {s(sSPIN)}, {self.c.spin_max}", f"s_cbranch_scc1 {L}")
        E(f"{D}:")

    def nonce(self):
        self.E(f"s_and_b32 {s(sT0)}, {s(sTV)}, 1", f"s_lshr_b32 {s(sT1)}, {s(sTV)}, 15", f"s_and_b32 {s(sT1)}, {s(sT1)}, 2",
               f"s_or_b32 {s(sT0)}, {s(sT0)}, {s(sT1)}", f"s_add_u32 {s(sT0)}, {s(sT0)}, 1", f"s_and_b32 {s(sT0)}, {s(sT0)}, 3",
               f"s_mul_i32 {s(sTW)}, {s(sT0)}, 0x01000193", f"s_add_u32 {s(sTW)}, {s(sTW)}, 0x6b2f91d4",
               f"s_and_b32 {s(sT1)}, {s(sT0)}, 2", f"s_lshl_b32 {s(sT1)}, {s(sT1)}, 15", f"s_and_b32 {s(sT0)}, {s(sT0)}, 1",
               f"s_or_b32 {s(sTV)}, {s(sT0)}, {s(sT1)}", f"v_mov_b32 {v(VTV)}, {s(sTV)}")

    def code_prefetch(self, tmp, dst):
        E = self.E
        E(f"v_lshlrev_b32 {v(tmp)}, 6, v0")
        E(f"global_load_dword {v(dst)}, {v(tmp)}, {s(sPC,2)}")
        E(f"v_add_u32 {v(tmp)}, 0x4000, {v(tmp)}")
        E(f"global_load_dword {v(dst)}, {v(tmp)}, {s(sPC,2)}")

    def cs(self, ang, c, sn):
        return [f"v_cos_f32 {v(c)}, {v(ang)}", f"v_sin_f32 {v(sn)}, {v(ang)}"]

    def entry(self):
        E = self.E
        a = self.a
        a.raw(f".globl {KNAME}\n.p2align 8\n.type {KNAME},@function\n{KNAME}:")
        self.stamp(0)
        E(f"s_getpc_b64 {s(sPC,2)}")
        E("s_cmp_ge_u32 s2, 512", "s_cbranch_scc1 Lend")
        E("s_load_dwordx16 s[8:23], s[0:1], 0", "s_load_dwordx8 s[24:31], s[0:1], 64", "s_load_dwordx4 s[32:35], s[0:1], 96")
        E("v_lshrrev_b32 v2, 6, v0", "v_and_b32 v1, 63, v0", f"v_readfirstlane_b32 {s(sW)}, v2")
        E(f"s_mov_b32 {s(sSPIN)}, 0", f"s_mov_b32 {s(sNM)}, {hex(~TAGM & 0xffffffff)}",
          f"s_mov_b32 {s(sSELLO)}, 0x05040100", f"s_mov_b32 {s(sSELHI)}, 0x07060302")
        E("s_cmp_ge_u32 s2, 256", "s_cbranch_scc1 LpathA")

    XR, P, F, TW, AL, H, WR = 10, 26, 42, 66, 98, 106, 122
    WSP, GW, DSK = 138, 140, 142
    T, C2 = 144, 208
    EF = 106
    CI, YF = 208, 240
    L_PL, L_W, L_WSP, L_YIN, L_GP = 0, 16384, 32768, 34816, 51200
    L_P3 = 16384
    def Fc(self, t): return self.F + 4 * t
    def Fs(self, t): return self.F + 8 + 4 * t
    def Fn(self, t): return self.F + 16 + 4 * t

    def twiddle(self, pk, tr, ti, tw, dstr, dsti, sign, tmp):
        o = []
        c0, s0 = tw, tw + 16
        for m in range(8):
            r = 2 * m
            t = tmp + 4 * (m & 1)
            if pk:
                ng = " neg_lo:[0,1,0] neg_hi:[0,1,0]"
                o.append(f"v_pk_mul_f32 {v(t,2)}, {v(tr+r,2)}, {v(c0+r,2)}")
                o.append(f"v_pk_mul_f32 {v(t+2,2)}, {v(ti+r,2)}, {v(c0+r,2)}")
                o.append(f"v_pk_fma_f32 {v(t,2)}, {v(ti+r,2)}, {v(s0+r,2)}, {v(t,2)}" + (ng if sign > 0 else ""))
                o.append(f"v_pk_fma_f32 {v(t+2,2)}, {v(tr+r,2)}, {v(s0+r,2)}, {v(t+2,2)}" + (ng if sign < 0 else ""))
            else:
                for e in range(2):
                    o.append(f"v_mul_f32 {v(t+e)}, {v(tr+r+e)}, {v(c0+r+e)}")
                    o.append(f"v_mul_f32 {v(t+2+e)}, {v(ti+r+e)}, {v(c0+r+e)}")
                for e in range(2):
                    o.append(f"v_fma_f32 {v(t+e)}, {v(ti+r+e)}, {'-' if sign > 0 else ''}{v(s0+r+e)}, {v(t+e)}")
                    o.append(f"v_fma_f32 {v(t+2+e)}, {v(tr+r+e)}, {'-' if sign < 0 else ''}{v(s0+r+e)}, {v(t+2+e)}")
            o.append(cvt(dstr + m, t, t + 1))
            o.append(cvt(dsti + m, t + 2, t + 3))
        return o

    def gen_tw(self, base, h4, tw):
        o = []
        for r in range(16):
            k = 8 * (r >> 2) + (r & 3)
            o.append(fmak(tw + 16 + r, base, k, h4))
            o.append(f"v_cos_f32 {v(tw+r)}, {v(tw+16+r)}")
            o.append(f"v_sin_f32 {v(tw+16+r)}, {v(tw+16+r)}")
        return o

    def pathB(self):
        E = self.E; c = self.c
        XR, P, TW, AL, H, WR, T, C2 = self.XR, self.P, self.TW, self.AL, self.H, self.WR, self.T, self.C2
        E(f"s_setprio {c.prio_b}")
        E(f"s_and_b32 {s(sKAP)}, s2, 7", f"s_lshr_b32 {s(sJ)}, s2, 3", f"s_lshl_b32 {s(sS2)}, {s(sKAP)}, 5", f"s_or_b32 {s(sS2)}, {s(sS2)}, {s(sJ)}")
        E("v_lshlrev_b32 v3, 3, v0")
        E(f"s_lshl_b32 {s(sT0)}, {s(sS2)}, 11")
        E("s_waitcnt lgkmcnt(0)")
        E(f"s_load_dword {s(sTV)}, {s(sWSp,2)}, 0")
        self.srd(SX, sX, 4194304)
        for s1 in range(8):
            E(f"buffer_load_dwordx2 {v(XR+2*s1,2)}, v3, {s(SX,4)}, {s(sT0)} offen")
            if s1 < 7: E(f"s_add_u32 {s(sT0)}, {s(sT0)}, {1<<19}")
        self.code_prefetch(4, 255)
        E(f"global_load_dwordx2 {v(self.GW,2)}, v3, {s(sGWp,2)}", f"global_load_dwordx2 {v(self.DSK,2)}, v3, {s(sDSK,2)}")
        self.srd(SWS, sWSp, WS_BYTES); self.srd(SWR, sWRp, 2101248); self.srd(SWI, sWIp, 2101248); self.srd(SOUT, sOUTp, 4194304)
        E(f"s_cmp_gt_u32 {s(sKAP)}, 4", f"s_cselect_b32 {s(sNEG)}, 1, 0", f"s_cselect_b32 {s(sT0)}, 8, 0", f"s_cselect_b32 {s(sT1)}, 0, 31",
          f"s_sub_i32 {s(sK1)}, {s(sKAP)}, {s(sT0)}", f"s_cmp_eq_u32 {s(sJ)}, {s(sT1)}", f"s_cselect_b32 {s(sSPEC)}, 1, 0")
        E(f"s_mov_b32 {s(sMLO)}, 0x00000f0f", f"s_mov_b32 {s(sMLO+1)}, 0x0000f0f0", f"s_mov_b32 {s(sMHI)}, 0x0f0f0000", f"s_mov_b32 {s(sMHI+1)}, 0xf0f00000")
        def wloads():
            E(f"s_add_u32 {s(sT0)}, {s(sK1)}, 2048", f"s_lshl_b32 {s(sT1)}, {s(sJ)}, 4", f"s_add_u32 {s(sT1)}, {s(sT1)}, {s(sNEG)}", f"s_lshl_b32 {s(sT1)}, {s(sT1)}, 1")
            E("v_lshrrev_b32 v4, 1, v0", f"v_lshl_add_u32 v4, v4, 3, {s(sT0)}", "v_add_u32 v5, 1024, v4", "v_and_b32 v4, 2047, v4", "v_and_b32 v5, 2047, v5",
              "v_and_b32 v6, 1, v0", f"v_lshl_add_u32 v6, v6, 4, {s(sT1)}", f"s_movk_i32 {s(sT2)}, 1026",
              f"v_mad_u32_u24 v4, v4, {s(sT2)}, v6", f"v_mad_u32_u24 v5, v5, {s(sT2)}, v6")
            E(f"buffer_load_dwordx4 {v(WR,4)}, v4, {s(SWR,4)}, 0 offen", f"buffer_load_dwordx4 {v(WR+4,4)}, v5, {s(SWR,4)}, 0 offen",
              f"buffer_load_dwordx4 {v(WR+8,4)}, v4, {s(SWI,4)}, 0 offen", f"buffer_load_dwordx4 {v(WR+12,4)}, v5, {s(SWI,4)}, 0 offen")
            E(f"s_cmp_eq_u32 {s(sNEG)}, 1", f"s_cselect_b32 {s(sT1)}, 0, 1024", f"s_cmp_eq_u32 {s(sSPEC)}, 1", f"s_cselect_b32 {s(sT1)}, {s(sT1)}, 0x1000000",
              f"v_lshl_add_u32 v4, v0, 3, {s(sT0)}", "v_and_b32 v4, 2047, v4", f"v_mul_u32_u24 v4, {s(sT2)}, v4")
            E(f"buffer_load_ushort {v(self.WSP)}, v4, {s(SWR,4)}, {s(sT1)} offen", f"buffer_load_ushort {v(self.WSP+1)}, v4, {s(SWI,4)}, {s(sT1)} offen")
        E("v_and_b32 v2, 31, v1", "v_lshrrev_b32 v6, 5, v1", "v_cvt_f32_u32 v2, v2", "v_cvt_f32_u32 v6, v6")
        E("v_bfe_u32 v4, v1, 3, 1", "v_and_b32 v5, 3, v1", "v_lshl_add_u32 v4, v4, 2, v5")
        E("v_lshrrev_b32 v5, 1, v4", "v_cmp_eq_u32 vcc, 1, v4", "v_cndmask_b32 v5, v5, 4, vcc", "v_cvt_f32_u32 v5, v5", "v_mul_f32 v5, 0x3e000000, v5")
        E("v_and_b32 v7, 1, v4", "v_cndmask_b32 v7, v7, 0, vcc", "v_cvt_f32_u32 v7, v7", "v_mul_f32 v7, 0x3e800000, v7")
        for j in range(8):
            E(fmak(T + j, 5, j, 7), f"v_cos_f32 {v(T+j)}, {v(T+j)}")
        for m in range(4):
            E(cvt(T + 8 + m, T + 2 * m, T + 2 * m + 1))
        for m in range(4):
            E(f"v_cndmask_b32 {v(AL+m)}, 0, {v(T+8+m)}, {s(sMLO,2)}", f"v_cndmask_b32 {v(AL+4+m)}, 0, {v(T+8+m)}, {s(sMHI,2)}")
        if c.w_early:
            wloads()
            E("v_lshrrev_b32 v6, 5, v1", "v_cvt_f32_u32 v6, v6")
        E("v_mul_f32 v4, 0x3d000000, v2", "v_mul_f32 v5, 4.0, v6", "v_mul_f32 v5, v4, v5")
        def frag32(base, a0, outs):
            for t in range(2):
                for j in range(8):
                    k = 16 * t + 8 * (j >> 2) + (j & 3)
                    E(fmak(T + 8 + j, base, k, a0), f"v_cos_f32 {v(T+j)}, {v(T+8+j)}", f"v_sin_f32 {v(T+8+j)}, {v(T+8+j)}")
                for m in range(4):
                    E(outs(t, m, T + 2 * m, T + 2 * m + 1, T + 8 + 2 * m, T + 9 + 2 * m))
        frag32(4, 5, lambda t, m, c0, c1, s0, s1: [cvt(self.Fc(t) + m, c0, c1), cvt(self.Fs(t) + m, s0, s1, True, True), cvt(self.Fn(t) + m, s0, s1)])
        E("v_mul_f32 v4, 0x3d000000, v4", "v_mul_f32 v5, 0x3d000000, v5")
        E(self.gen_tw(4, 5, TW))
        Lnh = self.label("noH")
        E(f"s_cmp_lg_u32 {s(sW)}, 0", f"s_cbranch_scc1 {Lnh}")
        E("v_bfe_u32 v4, v1, 3, 2", "v_bfe_u32 v5, v1, 1, 2", "v_lshl_add_u32 v4, v4, 2, v5", "v_cvt_f32_u32 v4, v4", "v_mul_f32 v4, 0x3d000000, v4",
          "v_and_b32 v7, 1, v1", "v_cvt_f32_u32 v7, v7", "v_mul_f32 v7, 0x3e800000, v7", "v_mul_f32 v5, 4.0, v6", "v_fma_f32 v5, v4, v5, v7")
        frag32(4, 5, lambda t, m, c0, c1, s0, s1: [cvt(H + 4 * t + m, c0, c1), cvt(H + 8 + 4 * t + m, s0, s1)])
        E(f"{Lnh}:")
        F1, F2, F4, TW1, TW2 = C2, C2 + 8, C2 + 16, C2 + 24, C2 + 32
        E("v_and_b32 v4, 15, v1", "v_cvt_f32_u32 v4, v4", "v_lshrrev_b32 v5, 4, v1", "v_cvt_f32_u32 v5, v5", "v_mul_f32 v5, 4.0, v5",
          f"v_cvt_f32_i32 v7, {s(sK1)}", "v_fmamk_f32 v8, v4, 0x41000000, v7")
        for r in range(4):
            y = T + 16
            E(f"v_add_f32 {v(y)}, {lit(float(r)) if r != 3 else hex_f(3.0)}, v5")
            E(f"v_mul_f32 {v(T)}, v8, {v(y)}", f"v_mul_f32 {v(T+1)}, v4, {v(y)}", f"v_fmamk_f32 {v(T+2)}, {v(y)}, 0x41000000, v7", f"v_mul_f32 {v(T+2)}, v4, {v(T+2)}")
            E(f"v_mul_f32 {v(T+3)}, {hex_f(1/128)}, {v(T)}", f"v_mul_f32 {v(T+4)}, {hex_f(1/16)}, {v(T+1)}", f"v_mul_f32 {v(T+5)}, {hex_f(1/128)}, {v(T+2)}",
              f"v_mul_f32 {v(T)}, {hex_f(1/2048)}, {v(T)}", f"v_mul_f32 {v(T+2)}, {hex_f(1/2048)}, {v(T+2)}")
            E(self.cs(T + 3, T + 6, T + 7), self.cs(T + 4, T + 8, T + 9), self.cs(T + 5, T + 10, T + 11), self.cs(T, TW1 + r, TW1 + 4 + r), self.cs(T + 2, TW2 + r, TW2 + 4 + r))
            E(cvt(F1 + r, T + 6, T + 7), cvt(F1 + 4 + r, T + 7, T + 6, True, False))
            E(cvt(F2 + r, T + 8, T + 9), cvt(F2 + 4 + r, T + 9, T + 8, True, False))
            E(cvt(F4 + r, T + 10, T + 11, False, True), cvt(F4 + 4 + r, T + 11, T + 10))
            E(f"v_mul_f32 {v(TW2+r)}, {hex_f(2.0**-20)}, {v(TW2+r)}", f"v_mul_f32 {v(TW2+4+r)}, {hex_f(2.0**-20)}, {v(TW2+4+r)}")
        E("v_lshrrev_b32 v4, 2, v0", "v_lshlrev_b32 v4, 16, v4", "v_and_b32 v5, 3, v0", "v_lshl_add_u32 v4, v5, 4, v4")
        E("v_bfe_u32 v6, v1, 2, 2", "v_lshrrev_b32 v7, 5, v1", "v_lshl_add_u32 v6, v7, 2, v6", "v_lshlrev_b32 v6, 6, v6", "v_lshl_add_u32 v5, v5, 3, v6",
          "v_bfe_u32 v6, v1, 4, 1", "v_lshl_add_u32 v5, v6, 5, v5", f"s_lshl_b32 {s(sT0)}, {s(sW)}, 12", f"v_add_u32 v5, {s(sT0)}, v5")
        E("s_waitcnt lgkmcnt(0)")
        self.nonce()
        E(f"s_lshl_b32 {s(sB0)}, {s(sS2)}, 6", f"s_add_u32 {s(sT0)}, {s(sB0)}, {WS_UT}")
        self.stamp(1)
        E(f"s_waitcnt vmcnt({(6 if c.w_early else 0) + 4})")
        self.stamp(2)
        for cc in range(4):
            for m in range(4):
                E(f"v_perm_b32 {v(P+4*cc+m)}, {v(XR+4*m+2+(cc>>1))}, {v(XR+4*m+(cc>>1))}, {s(sSELHI if cc&1 else sSELLO)}")
            if cc == 1:
                E(mf32(T, AL, P, "0"), mf32(T, AL + 4, P + 4))
        E(mf32(T + 16, AL, P + 8, "0"), mf32(T + 16, AL + 4, P + 12))
        for cc in range(4):
            t = T + 32 + 4 * cc
            for m in range(4):
                E(tag(t + m, P + 4 * cc + m))
            E(f"buffer_store_dwordx4 {v(t,4)}, v4, {s(SWS,4)}, {s(sT0)} offen sc1")
            if cc < 3: E(f"s_add_u32 {s(sT0)}, {s(sT0)}, 16384")
        for p in range(8):
            t = T + 48 + 2 * (p & 3)
            E(cvt(t, T + p, T + 8 + p), cvt(t + 1, T + 16 + p, T + 24 + p), f"ds_write_b64 v3, {v(t,2)} offset:{self.L_PL + 2048*p}")
        if not c.w_early:
            raise NotImplementedError
        E("s_waitcnt vmcnt(10)")
        G = T + 32 + 24
        for s1 in range(8):
            E(f"v_dot2_f32_bf16 {v(G+s1)}, {v(XR+2*s1)}, {v(self.GW)}, 0")
        for s1 in range(8):
            E(f"v_dot2_f32_bf16 {v(G+s1)}, {v(XR+2*s1+1)}, {v(self.GW+1)}, {v(G+s1)}")
        for k in range(4):
            E(f"v_permlane32_swap_b32 {v(G+k)}, {v(G+4+k)}")
        for k in range(4):
            E(f"v_add_f32 {v(G+k)}, {v(G+k)}, {v(G+4+k)}")
        for k in range(2):
            E(f"v_permlane16_swap_b32 {v(G+k)}, {v(G+2+k)}")
        for k in range(2):
            E(f"v_add_f32 {v(G+k)}, {v(G+k)}, {v(G+2+k)}")
        for sh in (8, 4, 2, 1):
            for k in range(2):
                E(f"v_add_f32_dpp {v(G+k)}, {v(G+k)}, {v(G+k)} row_ror:{sh} row_mask:0xf bank_mask:0xf")
        E("v_lshrrev_b32 v6, 4, v1", "v_lshlrev_b32 v6, 5, v6", f"s_lshl_b32 {s(sT1)}, {s(sW)}, 2", f"v_add_u32 v6, {s(sT1)}, v6")
        E(f"ds_write_b32 v6, {v(G)} offset:{self.L_GP}", f"ds_write_b32 v6, {v(G+1)} offset:{self.L_GP+16}")
        E("s_waitcnt lgkmcnt(0)", "s_barrier")
        for pl in range(2):
            for t in range(2):
                for u in range(2):
                    E(f"ds_read_b64_tr_b16 {v(XR+8*pl+4*t+2*u,2)}, v5 offset:{self.L_PL + 2048*pl + 1024*t + 512*u}")
        E("v_bfe_u32 v6, v1, 4, 1", "v_lshlrev_b32 v6, 14, v6", "v_and_b32 v7, 15, v1", "v_lshl_add_u32 v6, v7, 2, v6", "v_lshrrev_b32 v7, 5, v1")
        Lreal = self.label("b1real"); Ldone = self.label("b1done")
        E(f"s_cmp_eq_u32 {s(sW)}, 0", f"s_cbranch_scc1 {Lreal}")
        Xr, Xi = XR, XR + 8
        Tr, Ti = T, T + 16
        E("v_lshl_add_u32 v6, v7, 17, v6", f"v_sub_u32 v7, {(1<<17) + (1<<14) + 60}, v6")
        E(f"s_lshl_b32 {s(sT0)}, {s(sW)}, 19", f"s_add_u32 {s(sB1)}, {s(sB0)}, {WS_Y1}", f"s_add_u32 {s(sT2)}, {s(sB1)}, {s(sT0)}",
          f"s_sub_u32 {s(sT3)}, {s(sB1)}, {s(sT0)}", f"s_add_u32 {s(sT3)}, {s(sT3)}, {8<<19}")
        E("s_waitcnt lgkmcnt(4)")
        E(mf32(Tr, Xr, self.Fc(0), "0"), mf32(Ti, Xr, self.Fs(0), "0"), mf32(Tr, Xr + 4, self.Fc(1)), mf32(Ti, Xr + 4, self.Fs(1)))
        E("s_waitcnt lgkmcnt(0)")
        E(mf32(Tr, Xi, self.Fn(0)), mf32(Ti, Xi, self.Fc(0)), mf32(Tr, Xi + 4, self.Fn(1)), mf32(Ti, Xi + 4, self.Fc(1)))
        Ur, Ui = XR, XR + 8
        E(self.twiddle(c.pk_b1, Tr, Ti, TW, Ur, Ui, -1, T + 32))
        Zr, Zi = T + 32, T + 48
        E(mf32(Zr, self.Fc(0), Ur, "0"), mf32(Zi, self.Fs(0), Ur, "0"), mf32(Zr, self.Fn(0), Ui), mf32(Zi, self.Fc(0), Ui),
          mf32(Zr, self.Fc(1), Ur + 4), mf32(Zi, self.Fs(1), Ur + 4), mf32(Zr, self.Fn(1), Ui + 4), mf32(Zi, self.Fc(1), Ui + 4))
        for r in range(16):
            a_, b_ = r >> 2, r & 3
            t = T + r
            E(cvt(t, Zr + r, Zi + r, False, a_ >= 2), tag(t, t))
            if a_ < 2:
                E(f"s_add_u32 {s(sT0)}, {s(sT2)}, {(16*a_+2*b_)*16384}", f"buffer_store_dword {v(t)}, v6, {s(SWS,4)}, {s(sT0)} offen sc1")
            else:
                E(f"s_add_u32 {s(sT0)}, {s(sT3)}, {(16*(3-a_)+2*(3-b_))*16384}", f"buffer_store_dword {v(t)}, v7, {s(SWS,4)}, {s(sT0)} offen sc1")
        E(cvt(T + 16, Zr + 8, Zi + 8), f"v_mov_b32 {v(T+17)}, {s(sTW)}", cvt(T + 18, Zr, Zi, False, True), f"v_mov_b32 {v(T+19)}, {s(sTW)}")
        E(f"s_lshl_b32 {s(sT0)}, {s(sW)}, 11", f"s_sub_u32 {s(sT1)}, 16384, {s(sT0)}")
        E(f"s_branch {Ldone}")
        E(f"{Lreal}:")
        E("v_lshl_add_u32 v6, v7, 16, v6", f"s_add_u32 {s(sT2)}, {s(sB0)}, {WS_Y1}")
        NY = 248
        E("v_and_b32 v7, 31, v1", "v_cmp_eq_u32 vcc, 0, v7", "v_mov_b32 v7, 0xbf803f80")
        for m in range(4):
            E(f"v_cndmask_b32 {v(NY+m)}, 0, v7, vcc")
        E("s_waitcnt lgkmcnt(4)")
        E(mf32(T, XR, self.Fc(0), "0"), mf32(T + 16, XR, self.Fs(0), "0"), mf32(T, XR + 4, self.Fc(1)), mf32(T + 16, XR + 4, self.Fs(1)))
        E("s_waitcnt lgkmcnt(0)")
        E(mf32(T + 32, XR + 8, self.Fc(0), "0"), mf32(T + 48, XR + 8, self.Fs(0), "0"), mf32(T + 32, XR + 12, self.Fc(1)), mf32(T + 48, XR + 12, self.Fs(1)))
        TMP = 98
        E(self.twiddle(c.pk_b1, T, T + 16, TW, XR, XR + 8, -1, TMP))
        E(mf32(T, H, XR, "0"), mf32(T + 16, NY, XR, "0"), mf32(T, H + 8, XR + 8), mf32(T + 16, NY, XR + 4), mf32(T, H + 4, XR + 4), mf32(T, H + 12, XR + 12))
        tw1 = self.twiddle(c.pk_b1, T + 32, T + 48, TW, XR, XR + 8, -1, TMP)
        E(tw1)
        def st_real(z, kap):
            o = []
            for k in range(8):
                a_, bb = k >> 1, k & 1
                t = TMP + k
                o += [cvt(t, z + 2 * k, z + 2 * k + 1), tag(t, t), f"s_add_u32 {s(sT0)}, {s(sT2)}, {(kap<<19) + (8*a_+2*bb)*16384}",
                      f"buffer_store_dword {v(t)}, v6, {s(SWS,4)}, {s(sT0)} offen sc1"]
            return o
        E(mf32(T + 32, H, XR, "0"), mf32(T + 48, NY, XR, "0"), mf32(T + 32, H + 8, XR + 8), mf32(T + 48, NY, XR + 4), mf32(T + 32, H + 4, XR + 4), mf32(T + 32, H + 12, XR + 12))
        E(st_real(T, 0))
        E(cvt(T + 16, T + 16, "0"), f"v_mov_b32 {v(T+17)}, {s(sTW)}", f"v_mov_b32 {v(T+19)}, {s(sTW)}")
        E(st_real(T + 32, 4))
        E(cvt(T + 18, T + 48, "0"))
        E(f"s_mov_b32 {s(sT0)}, 0", f"s_movk_i32 {s(sT1)}, 8192")
        E(f"{Ldone}:")
        E(f"s_lshl_b32 {s(sT2)}, {s(sS2)}, 3", f"s_add_u32 {s(sT2)}, {s(sT2)}, {WS_Y1S}", f"s_add_u32 {s(sT0)}, {s(sT0)}, {s(sT2)}", f"s_add_u32 {s(sT1)}, {s(sT1)}, {s(sT2)}")
        E("s_mov_b64 exec, 1", f"buffer_store_dwordx2 {v(T+16,2)}, off, {s(SWS,4)}, {s(sT0)} sc1", f"buffer_store_dwordx2 {v(T+18,2)}, off, {s(SWS,4)}, {s(sT1)} sc1", "s_mov_b64 exec, -1")
        self.stamp(3)
        E("s_waitcnt vmcnt(22)")
        E("v_lshlrev_b32 v4, 4, v0", "v_lshlrev_b32 v5, 1, v0")
        for k in range(4):
            E(f"ds_write_b128 v4, {v(WR+4*k,4)} offset:{self.L_W + 8192*(k>>1) + 4096*(k&1)}")
        E(f"ds_write_b16 v5, {v(self.WSP)} offset:{self.L_WSP}", f"ds_write_b16 v5, {v(self.WSP+1)} offset:{self.L_WSP+512}")
        E("v_and_b32 v6, 15, v1", "v_lshrrev_b32 v7, 4, v1", "v_lshl_add_u32 v6, v7, 6, v6")
        E(f"s_lshl_b32 {s(sT0)}, {s(sW)}, 3", f"v_lshl_add_u32 v7, v6, 5, {s(sT0)}", "v_lshlrev_b32 v6, 1, v6")
        E("s_waitcnt lgkmcnt(0)", "s_barrier")
        for r in range(4):
            E(f"ds_read_b64 {v(T+4*r,2)}, v7 offset:{self.L_W + 512*r}", f"ds_read_b64 {v(T+4*r+2,2)}, v7 offset:{self.L_W + 8192 + 512*r}")
        for r in range(4):
            E(f"ds_read_u16 {v(AL+r)}, v6 offset:{self.L_WSP + 32*r}", f"ds_read_u16 {v(AL+4+r)}, v6 offset:{self.L_WSP + 512 + 32*r}")
        E("s_waitcnt lgkmcnt(0)")
        WF = TW
        for r in range(4):
            for cc in range(4):
                for part in range(2):
                    src = T + 4 * r + 2 * part + (cc >> 1); d = WF + 8 * cc + 4 * part + r
                    E(f"v_and_b32 {v(d)}, 0xffff0000, {v(src)}" if cc & 1 else f"v_lshlrev_b32 {v(d)}, 16, {v(src)}")
        for r in range(8):
            E(f"v_lshlrev_b32 {v(AL+r)}, 16, {v(AL+r)}")
        EF = self.EF
        def pi_d2(dst):
            return [f"v_bfe_u32 {v(dst)}, v1, 3, 2", "v_and_b32 v7, 3, v1", f"v_lshl_add_u32 {v(dst)}, v7, 2, {v(dst)}", "v_bfe_u32 v7, v1, 2, 1",
                    f"v_lshl_add_u32 {v(dst)}, v7, 4, {v(dst)}", f"v_cvt_f32_u32 {v(dst)}, {v(dst)}", "v_lshrrev_b32 v7, 5, v1", "v_cvt_f32_u32 v7, v7", "v_mul_f32 v7, 4.0, v7"]
        E(pi_d2(4), "v_mul_f32 v4, 0x3d000000, v4", "v_mul_f32 v5, v4, v7")
        for ks in range(4):
            for m in range(4):
                E(fmak(T + 4 + m, 4, 8 * ks + m, 5), f"v_cos_f32 {v(T+m)}, {v(T+4+m)}", f"v_sin_f32 {v(T+4+m)}, {v(T+4+m)}")
            for m in range(4):
                if ks < 2:
                    E(cvt(EF + 8 * ks + m, T + m, T + 4 + m, False, True), cvt(EF + 8 * ks + 4 + m, T + 4 + m, T + m))
                else:
                    E(cvt(EF + 8 * ks + m, T + m, T + 4 + m), cvt(EF + 8 * ks + 4 + m, T + 4 + m, T + m, False, True))
        E("v_lshlrev_b32 v4, 4, v0", "v_bfe_u32 v5, v0, 4, 2", "v_lshlrev_b32 v5, 4, v5", "v_xor_b32 v5, v4, v5")
        E("v_and_b32 v7, 15, v1", "v_lshrrev_b32 v6, 4, v1", "v_lshlrev_b32 v6, 12, v6", "v_lshl_add_u32 v6, v7, 6, v6",
          "v_bfe_u32 v8, v1, 1, 2", f"v_xor_b32 v8, {s(sW)}, v8", "v_lshl_add_u32 v8, v8, 4, v6",
          "v_bfe_u32 v7, v1, 2, 2", f"v_xor_b32 v7, {s(sW)}, v7", "v_lshl_add_u32 v6, v7, 4, v6")
        E(f"s_lshl_b32 {s(sT0)}, {s(sKAP)}, 5", f"s_add_u32 {s(sT0)}, {s(sT0)}, {s(sJ)}", f"s_lshl_b32 {s(sT0)}, {s(sT0)}, 14", f"s_add_u32 {s(sT0)}, {s(sT0)}, {WS_Y1}",
          f"s_add_u32 {s(sT1)}, {s(sT0)}, 4096", f"s_add_u32 {s(sT2)}, {s(sT0)}, 8192", f"s_add_u32 {s(sT3)}, {s(sT0)}, 12288")
        self.stamp(4)
        self.poll([f"buffer_load_dwordx4 {v(XR+4*r,4)}, v4, {s(SWS,4)}, {s(sT0+r)} offen sc1" for r in range(4)], list(range(XR, XR + 16)))
        for r in range(4):
            E(f"ds_write_b128 v5, {v(XR+4*r,4)} offset:{self.L_YIN + 4096*r}")
        SPD = 248
        Lnsp = self.label("nosp")
        E(f"s_cmp_eq_u32 {s(sW)}, 0", f"s_cselect_b32 {s(sSPEC)}, {s(sSPEC)}, 0", f"s_cmp_eq_u32 {s(sSPEC)}, 0", f"s_cbranch_scc1 {Lnsp}")
        E("v_and_b32 v7, 15, v1", "v_lshrrev_b32 v3, 4, v1", "v_lshl_add_u32 v7, v3, 6, v7", "v_lshlrev_b32 v7, 3, v7",
          f"s_lshl_b32 {s(sT0)}, {s(sKAP)}, 11", f"s_add_u32 {s(sT0)}, {s(sT0)}, {WS_Y1S}")
        L = self.label("pollsp"); D = self.label("oksp")
        E(f"{L}:")
        for r in range(4):
            E(f"buffer_load_dwordx2 {v(T+2*r,2)}, v7, {s(SWS,4)}, {s(sT0)} offen offset:{128*r} sc1")
        E("s_waitcnt vmcnt(0)", f"v_xor_b32 v2, {s(sTW)}, {v(T+1)}")
        for r in range(1, 4):
            E(f"v_bitop3_b32 v2, v2, {v(T+2*r+1)}, {s(sTW)} bitop3:0xf6")
        E("v_cmp_ne_u32 vcc, 0, v2", f"s_cbranch_vccz {D}", f"s_add_u32 {s(sSPIN)}, {s(sSPIN)}, 1", f"s_cmp_lt_u32 {s(sSPIN)}, {c.spin_max}", f"s_cbranch_scc1 {L}", f"{D}:")
        for r in range(4):
            E(f"v_mov_b32 {v(SPD+r)}, {v(T+2*r)}")
        E(f"{Lnsp}:")
        E("s_waitcnt lgkmcnt(0)", "s_barrier")
        self.stamp(5)
        for r in range(4):
            E(f"ds_read_b128 {v(XR+4*r,4)}, v6 offset:{self.L_YIN + 1024*r}")
        E("v_lshrrev_b32 v4, 2, v0", "v_lshlrev_b32 v4, 14, v4", "v_and_b32 v7, 3, v0", "v_lshl_add_u32 v4, v7, 4, v4",
          "v_bfe_u32 v5, v0, 3, 2", "v_lshlrev_b32 v5, 4, v5", "v_lshlrev_b32 v7, 4, v0", "v_xor_b32 v5, v7, v5")
        E(f"s_lshl_b32 {s(sT0)}, {s(sKAP)}, 11", f"s_lshl_b32 {s(sT1)}, {s(sJ)}, 6", f"s_add_u32 {s(sB1)}, {s(sT0)}, {s(sT1)}", f"s_add_u32 {s(sB1)}, {s(sB1)}, {WS_Y2}")
        E("s_waitcnt lgkmcnt(0)")
        for a_ in range(4):
            for cc in range(a_ + 1, 4):
                E(f"v_swap_b32 {v(XR+4*a_+cc)}, {v(XR+4*cc+a_)}")
        L5 = self.label("b2five"); Lb2 = self.label("b2done")
        E(f"s_cmp_lg_u32 {s(sSPEC)}, 0", f"s_cbranch_scc1 {L5}")
        self.b2_compute(4, SPD)
        E(f"s_branch {Lb2}", f"{L5}:")
        self.b2_compute(5, SPD)
        E("v_and_b32 v7, 15, v1", "v_lshrrev_b32 v3, 4, v1", "v_lshl_add_u32 v7, v3, 6, v7", "v_lshlrev_b32 v7, 6, v7",
          f"s_lshl_b32 {s(sT0)}, {s(sKAP)}, 3", f"s_add_u32 {s(sT0)}, {s(sT0)}, {WS_Y2S}")
        for r in range(4):
            E(f"v_mov_b32 {v(T+2*r)}, {v(SPD+r)}", f"v_mov_b32 {v(T+2*r+1)}, {s(sTW)}",
              f"buffer_store_dwordx2 {v(T+2*r,2)}, v7, {s(SWS,4)}, {s(sT0)} offen offset:{1024*r} sc1")
        E(f"{Lb2}:")
        for r in range(4):
            E(f"ds_write_b128 v8, {v(XR+4*r,4)} offset:{self.L_PL + 1024*r}")
        E("s_waitcnt lgkmcnt(0)", "s_barrier")
        for r in range(4):
            E(f"ds_read_b128 {v(XR+4*r,4)}, v5 offset:{self.L_PL + 4096*r}")
        for r in range(4):
            E(f"s_waitcnt lgkmcnt({3-r})")
            for m in range(4):
                E(tag(XR + 4 * r + m, XR + 4 * r + m))
            E(f"buffer_store_dwordx4 {v(XR+4*r,4)}, v4, {s(SWS,4)}, {s(sB1)} offen sc1")
            if r < 3: E(f"s_add_u32 {s(sB1)}, {s(sB1)}, {1<<20}")
        self.stamp(6)
        self.b3()

    def cmul4(self, pk, xr, xi, wr, wi, sign, dst, tmp, swap=False):
        o = []
        if pk:
            ng = " neg_lo:[0,1,0] neg_hi:[0,1,0]"
            for p in range(2):
                t = tmp + 4 * p; r = 2 * p
                o.append(f"v_pk_mul_f32 {v(t,2)}, {v(xr+r,2)}, {v(wr+r,2)}")
                o.append(f"v_pk_mul_f32 {v(t+2,2)}, {v(xi+r,2)}, {v(wr+r,2)}")
            for p in range(2):
                t = tmp + 4 * p; r = 2 * p
                o.append(f"v_pk_fma_f32 {v(t,2)}, {v(xi+r,2)}, {v(wi+r,2)}, {v(t,2)}" + (ng if sign > 0 else ""))
                o.append(f"v_pk_fma_f32 {v(t+2,2)}, {v(xr+r,2)}, {v(wi+r,2)}, {v(t+2,2)}" + (ng if sign < 0 else ""))
        else:
            for r in range(4):
                t = tmp + 4 * (r >> 1) + (r & 1)
                o.append(f"v_mul_f32 {v(t)}, {v(xr+r)}, {v(wr+r)}")
                o.append(f"v_mul_f32 {v(t+2)}, {v(xi+r)}, {v(wr+r)}")
            for r in range(4):
                t = tmp + 4 * (r >> 1) + (r & 1)
                o.append(f"v_fma_f32 {v(t)}, {v(xi+r)}, {'-' if sign > 0 else ''}{v(wi+r)}, {v(t)}")
                o.append(f"v_fma_f32 {v(t+2)}, {v(xr+r)}, {'-' if sign < 0 else ''}{v(wi+r)}, {v(t+2)}")
        for r in range(4):
            t = tmp + 4 * (r >> 1) + (r & 1)
            o.append(cvt(dst + r, t + 2, t) if swap else cvt(dst + r, t, t + 2))
        return o

    def b2_compute(self, ncol, SPD):
        E = self.E; c = self.c
        XR, T, C2 = self.XR, self.T, self.C2
        F1, F2, F4, TW1, TW2 = C2, C2 + 8, C2 + 16, C2 + 24, C2 + 32
        WF = self.TW
        D = lambda cc: T + 8 * cc
        PK = lambda cc: T + 40 + 4 * cc if cc < 4 else 252
        data = lambda cc: XR + 4 * cc if cc < 4 else SPD
        wre = lambda cc: WF + 8 * cc if cc < 4 else self.AL
        tmp = T + 56
        for cc in range(ncol):
            E(mf16(D(cc), data(cc), F1, "0"), mf16(D(cc) + 4, data(cc), F1 + 4, "0"))
        for cc in range(ncol):
            E(self.cmul4(c.pk_b2, D(cc), D(cc) + 4, TW1, TW1 + 4, -1, PK(cc), tmp))
            E(mf16(D(cc), F2, PK(cc), "0"), mf16(D(cc) + 4, F2 + 4, PK(cc), "0"))
        for cc in range(ncol):
            E(self.cmul4(c.pk_b2, D(cc), D(cc) + 4, wre(cc), wre(cc) + 4, +1, PK(cc), tmp, swap=True))
            E(mf16(D(cc) + 4, PK(cc), F2, "0"), mf16(D(cc), PK(cc), F2 + 4, "0"))
        for cc in range(ncol):
            E(self.cmul4(c.pk_b2, D(cc), D(cc) + 4, TW2, TW2 + 4, +1, PK(cc), tmp))
            E(mf16(D(cc), F4, PK(cc), "0"), mf16(D(cc) + 4, F4 + 4, PK(cc), "0"))
        for cc in range(ncol):
            for r in range(4):
                E(cvt(XR + 4 * r + cc if cc < 4 else SPD + r, D(cc) + r, D(cc) + 4 + r))

    def b3(self):
        E = self.E; c = self.c
        XR, P, TW, AL, T, EF, CI, YF = self.XR, self.P, self.TW, self.AL, self.T, self.EF, self.CI, self.YF
        E("v_bfe_u32 v4, v1, 3, 1", "v_and_b32 v5, 3, v1", "v_lshl_add_u32 v4, v4, 2, v5", "v_lshlrev_b32 v5, 4, v4")
        E(f"ds_read_b128 {v(T,4)}, v5 offset:{self.L_GP}")
        for cc in range(4):
            d = T + 8
            src = self.DSK + (cc >> 1)
            E(f"v_and_b32 {v(d)}, 0xffff0000, {v(src)}" if cc & 1 else f"v_lshlrev_b32 {v(d)}, 16, {v(src)}")
            for m in range(4):
                r = P + 4 * cc + m; t = T + 10 + 2 * (m & 1)
                E(f"v_lshlrev_b32 {v(t)}, 16, {v(r)}", f"v_and_b32 {v(t+1)}, 0xffff0000, {v(r)}", f"v_mul_f32 {v(t)}, {v(t)}, {v(d)}", f"v_mul_f32 {v(t+1)}, {v(t+1)}, {v(d)}", cvt(r, t, t + 1))
        E("s_waitcnt lgkmcnt(0)")
        E(f"v_add_f32 {v(T)}, {v(T)}, {v(T+1)}", f"v_add_f32 {v(T+2)}, {v(T+2)}, {v(T+3)}", f"v_add_f32 {v(T)}, {v(T)}, {v(T+2)}")
        E(cvt(T, T, T), f"v_lshlrev_b32 {v(T)}, 16, {v(T)}", f"v_mul_f32 {v(T)}, {hex_f(-LOG2E)}, {v(T)}", f"v_exp_f32 {v(T)}, {v(T)}", f"v_add_f32 {v(T)}, 1.0, {v(T)}",
          f"v_rcp_f32 {v(T)}, {v(T)}", cvt(T + 1, T, T), f"v_lshlrev_b32 {v(T)}, 16, {v(T+1)}", f"v_sub_f32 {v(T+2)}, 1.0, {v(T)}", cvt(T + 2, T + 2, T + 2), f"v_lshlrev_b32 {v(T+2)}, 16, {v(T+2)}")
        GD = T + 16
        E("v_and_b32 v5, 1, v4", "v_cmp_eq_u32 vcc, 1, v5", "v_mov_b32 v5, 0xffff", "v_mov_b32 v6, 0xffff0000", "v_cndmask_b32 v5, v5, v6, vcc", f"v_and_b32 {v(T+1)}, v5, {v(T+1)}",
          "v_lshrrev_b32 v5, 1, v4")
        for m in range(4):
            E(f"v_cmp_eq_u32 vcc, {m}, v5", f"v_cndmask_b32 {v(T+3)}, 0, {v(T+1)}, vcc",
              f"v_cndmask_b32 {v(GD+m)}, 0, {v(T+3)}, {s(sMLO,2)}", f"v_cndmask_b32 {v(GD+4+m)}, 0, {v(T+3)}, {s(sMHI,2)}")
        E(mf32(CI, GD, P, "0"), mf32(CI + 16, GD, P + 8, "0"), mf32(CI, GD + 4, P + 4), mf32(CI + 16, GD + 4, P + 12))
        E("v_cvt_f32_u32 v4, v4")
        kp = [0, 4, 1, 1, 2, 2, 3, 3]; ph = [0, 0, 0, .25, 0, .25, 0, .25]
        for p in range(8):
            t = T + 4 + p
            if p == 0:
                E(f"v_mov_b32 {v(t)}, {v(T+2)}"); continue
            E(f"v_mul_f32 {v(t)}, {lit(kp[p]/8)}, v4")
            E(f"v_sin_f32 {v(t)}, {v(t)}" if ph[p] else f"v_cos_f32 {v(t)}, {v(t)}")
            E(f"v_mul_f32 {v(t)}, {v(t)}, {v(T+2)}")
        for m in range(4):
            E(cvt(T + 12 + m, T + 4 + 2 * m, T + 5 + 2 * m, False, m > 0))
        for m in range(4):
            E(f"v_cndmask_b32 {v(AL+m)}, 0, {v(T+12+m)}, {s(sMLO,2)}", f"v_cndmask_b32 {v(AL+4+m)}, 0, {v(T+12+m)}, {s(sMHI,2)}")
        for k in range(8):
            E(f"v_mov_b32 {v(P+k)}, {v(GD+k)}")
        GD = P
        E("v_bfe_u32 v4, v1, 3, 2", "v_and_b32 v7, 3, v1", "v_lshl_add_u32 v4, v7, 2, v4", "v_bfe_u32 v7, v1, 2, 1", "v_lshl_add_u32 v4, v7, 4, v4", "v_cvt_f32_u32 v4, v4",
          "v_lshrrev_b32 v7, 5, v1", "v_cvt_f32_u32 v7, v7", "v_mul_f32 v7, 4.0, v7", f"v_mul_f32 v4, {hex_f(1/1024)}, v4", "v_mul_f32 v5, v4, v7")
        E(self.gen_tw(4, 5, TW))
        HF, SG = P + 8, P + 9
        E("v_cmp_gt_u32 vcc, 32, v1", f"v_cndmask_b32 {v(HF)}, 0, 0.5, vcc", "v_bfe_u32 v7, v1, 3, 1", "v_lshlrev_b32 v7, 31, v7", f"v_xor_b32 {v(SG)}, v7, {v(HF)}")
        E("v_and_b32 v7, 31, v1", "v_lshrrev_b32 v6, 5, v1", "v_lshlrev_b32 v4, 9, v6", "v_lshl_add_u32 v4, v7, 2, v4",
          f"v_mul_u32_u24 v6, 288, v6", "v_lshl_add_u32 v6, v7, 3, v6", f"s_mul_i32 {s(sT0)}, {s(sW)}, {2*2368}", f"v_add_u32 v6, {s(sT0)}, v6")
        E("v_bfe_u32 v8, v1, 2, 2", "v_mul_u32_u24 v8, 2368, v8", "v_and_b32 v7, 1, v1", "v_mul_u32_u24 v7, 288, v7", "v_add_u32 v8, v8, v7",
          "v_bfe_u32 v7, v1, 1, 1", "v_lshl_add_u32 v8, v7, 3, v8", "v_lshrrev_b32 v7, 4, v0", "v_lshl_add_u32 v8, v7, 4, v8", "v_lshlrev_b32 v3, 4, v0")
        E(f"s_lshl_b32 {s(sB0)}, {s(sS2)}, 14", f"s_add_u32 {s(sB1)}, {s(sB0)}, {WS_Y2}", f"s_lshl_b32 {s(sT2)}, {s(sS2)}, 6", f"s_add_u32 {s(sT2)}, {s(sT2)}, {WS_Y2S}")
        BC = P + 10
        Lreal = self.label("b3real"); Ldone = self.label("b3done")
        self.stamp(7)
        E(f"s_cmp_eq_u32 {s(sW)}, 0", f"s_cbranch_scc1 {Lreal}")
        unp = lambda d, r, hi: f"v_and_b32 {v(d)}, 0xffff0000, {v(r)}" if hi else f"v_lshlrev_b32 {v(d)}, 16, {v(r)}"
        def planes_out(vr, pl):
            o = []
            for a_ in range(4):
                t = XR + 8 * pl + 2 * a_
                o += [cvt(t, vr + 4 * a_, vr + 4 * a_ + 1), cvt(t + 1, vr + 4 * a_ + 2, vr + 4 * a_ + 3), f"ds_write_b64 v6, {v(t,2)} offset:{self.L_P3 + 2368*pl + 576*a_}"]
            return o
        E(f"v_sub_u32 v5, {512+124}, v4", f"s_lshl_b32 {s(sT3)}, {s(sW)}, 11", f"s_add_u32 {s(sT0)}, {s(sB1)}, {s(sT3)}", f"s_sub_u32 {s(sT1)}, {s(sB1)}, {s(sT3)}", f"s_add_u32 {s(sT1)}, {s(sT1)}, 16384",
          f"s_lshl_b32 {s(sT3)}, {s(sW)}, 3", f"s_sub_u32 {s(sB1)}, {s(sT2)}, {s(sT3)}", f"s_add_u32 {s(sT2)}, {s(sT2)}, {s(sT3)}")
        ld = []
        for ks in range(4):
            for m in range(4):
                if ks < 2: ld.append(f"buffer_load_dword {v(XR+4*ks+m)}, v4, {s(SWS,4)}, {s(sT0)} offen offset:{1024*ks+128*m} sc1")
                else: ld.append(f"buffer_load_dword {v(XR+4*ks+m)}, v5, {s(SWS,4)}, {s(sT1)} offen offset:{1024*(3-ks)+128*(3-m)} sc1")
        ld += [f"buffer_load_dword {v(BC)}, off, {s(SWS,4)}, {s(sT0)} sc1", f"buffer_load_dword {v(BC+1)}, off, {s(SWS,4)}, {s(sT1)} offset:2044 sc1",
               f"buffer_load_dwordx2 {v(BC+2,2)}, off, {s(SWS,4)}, {s(sT2)} sc1", f"buffer_load_dwordx2 {v(BC+4,2)}, off, {s(SWS,4)}, {s(sB1)} offset:64 sc1"]
        self.poll(ld, list(range(XR, XR + 16)) + [BC, BC + 1], [BC + 3, BC + 5])
        Tr, Ti = T, T + 16
        for ks in range(4):
            E(mf32(Tr, XR + 4 * ks, EF + 8 * ks, "0" if ks == 0 else None), mf32(Ti, XR + 4 * ks, EF + 8 * ks + 4, "0" if ks == 0 else None))
        self.ya_loads()
        t = T + 32
        E(unp(t, BC, 0), unp(t + 1, BC + 4, 0), unp(t + 2, BC + 2, 0), unp(t + 3, BC + 1, 0), unp(t + 4, BC, 1), unp(t + 5, BC + 4, 1), unp(t + 6, BC + 2, 1), unp(t + 7, BC + 1, 1))
        E(f"v_sub_f32 {v(t)}, {v(t+1)}, {v(t)}", f"v_sub_f32 {v(t+2)}, {v(t+2)}, {v(t+3)}", f"v_add_f32 {v(t+4)}, {v(t+4)}, {v(t+5)}", f"v_add_f32 {v(t+6)}, {v(t+6)}, {v(t+7)}",
          f"v_mul_f32 {v(t)}, {v(t)}, {v(HF)}", f"v_mul_f32 {v(t+4)}, {v(t+4)}, {v(HF)}", f"v_fmac_f32 {v(t)}, {v(t+2)}, {v(SG)}", f"v_fma_f32 {v(t+4)}, {v(t+6)}, {v(SG)}, -{v(t+4)}")
        E(f"v_add_f32 {v(Tr)}, {v(Tr)}, {v(t)}", f"v_add_f32 {v(Ti)}, {v(Ti)}, {v(t+4)}")
        E(self.twiddle(c.pk_b3, Tr, Ti, TW, XR, XR + 8, +1, T + 32))
        Vr, Vi = T + 32, T + 48
        Ur, Ui = XR, XR + 8
        E(mf32(Vr, Ur, self.Fc(0), "0"), mf32(Vr, Ui, self.Fs(0)), mf32(Vr, Ur + 4, self.Fc(1)), mf32(Vr, Ui + 4, self.Fs(1)),
          mf32(Vi, Ur, self.Fn(0), "0"), mf32(Vi, Ui, self.Fc(0)), mf32(Vi, Ur + 4, self.Fn(1)), mf32(Vi, Ui + 4, self.Fc(1)))
        E(planes_out(Vr, 0), planes_out(Vi, 1))
        E(f"s_branch {Ldone}")
        E(f"{Lreal}:")
        E(f"s_add_u32 {s(sT1)}, {s(sB1)}, 8192")
        ld = []
        for ks in range(4):
            for m in range(4):
                ld.append(f"buffer_load_dword {v(XR+4*ks+m)}, v4, {s(SWS,4)}, {s(sB1 if ks < 2 else sT1)} offen offset:{1024*(ks&1)+128*m} sc1")
        ld += [f"buffer_load_dword {v(BC)}, off, {s(SWS,4)}, {s(sB1)} sc1", f"buffer_load_dword {v(BC+1)}, off, {s(SWS,4)}, {s(sT1)} sc1",
               f"buffer_load_dwordx2 {v(BC+2,2)}, off, {s(SWS,4)}, {s(sT2)} sc1", f"buffer_load_dwordx2 {v(BC+4,2)}, off, {s(SWS,4)}, {s(sT2)} offset:32 sc1"]
        self.poll(ld, list(range(XR, XR + 16)) + [BC, BC + 1], [BC + 3, BC + 5])
        for row in range(2):
            for ks in range(2):
                E(mf32(T + 32 * row, XR + 8 * row + 4 * ks, EF + 8 * ks, "0" if ks == 0 else None), mf32(T + 32 * row + 16, XR + 8 * row + 4 * ks, EF + 8 * ks + 4, "0" if ks == 0 else None))
        self.ya_loads()
        TMP = EF + 16
        t = TMP + 8
        E(unp(t, BC, 0), unp(t + 1, BC + 2, 0), unp(t + 2, BC + 1, 0), unp(t + 3, BC + 4, 0))
        E(f"v_mul_f32 {v(t)}, {v(t)}, {v(HF)}", f"v_mul_f32 {v(t+2)}, {v(t+2)}, {v(HF)}", f"v_fma_f32 {v(t)}, {v(t+1)}, {v(SG)}, -{v(t)}", f"v_fma_f32 {v(t+2)}, {v(t+3)}, {v(SG)}, -{v(t+2)}")
        E(f"v_add_f32 {v(T)}, {v(T)}, {v(t)}")
        E(self.twiddle(c.pk_b3, T, T + 16, TW, XR, XR + 8, +1, TMP))
        E(mf32(T, XR, self.Fc(0), "0"), mf32(T, XR + 8, self.Fs(0)), mf32(T, XR + 4, self.Fc(1)), mf32(T, XR + 12, self.Fs(1)))
        E(f"v_add_f32 {v(T+32)}, {v(T+32)}, {v(t+2)}")
        E(self.twiddle(c.pk_b3, T + 32, T + 48, TW, XR, XR + 8, +1, TMP))
        E(mf32(T + 16, XR, self.Fc(0), "0"), mf32(T + 16, XR + 8, self.Fs(0)), mf32(T + 16, XR + 4, self.Fc(1)), mf32(T + 16, XR + 12, self.Fs(1)))
        E(planes_out(T, 0), planes_out(T + 16, 1))
        E(f"{Ldone}:")
        E("s_waitcnt lgkmcnt(0)", "s_barrier")
        self.stamp(8)
        for cc in range(4):
            for u in range(2):
                E(f"ds_read_b64_tr_b16 {v(XR+4*cc+2*u,2)}, v8 offset:{self.L_P3 + 576*cc + 4*2368*u}")
        L = self.label("polly"); D = self.label("oky")
        E(f"{L}:", "s_waitcnt vmcnt(0)", f"v_xor_b32 v2, {s(sTV)}, {v(YF)}")
        for r in range(1, 16):
            E(f"v_bitop3_b32 v2, v2, {v(YF+r)}, {s(sTV)} bitop3:0xf6")
        E(f"v_and_b32 v2, {TAGM}, v2", "v_cmp_ne_u32 vcc, 0, v2", f"s_cbranch_vccz {D}")
        if c.retry_sleep: E(f"s_sleep {c.retry_sleep}")
        self.ya_loads()
        E(f"s_add_u32 {s(sSPIN)}, {s(sSPIN)}, 1", f"s_cmp_lt_u32 {s(sSPIN)}, {c.spin_max}", f"s_cbranch_scc1 {L}", f"{D}:")
        E(mf32(CI, GD, YF), mf32(CI + 16, GD, YF + 8), mf32(CI, GD + 4, YF + 4), mf32(CI + 16, GD + 4, YF + 12))
        E("v_lshlrev_b32 v3, 3, v0", f"s_lshl_b32 {s(sT0)}, {s(sS2)}, 11")
        E("s_waitcnt lgkmcnt(0)")
        E(mf32(CI, AL, XR), mf32(CI, AL + 4, XR + 4), mf32(CI + 16, AL, XR + 8), mf32(CI + 16, AL + 4, XR + 12))
        for s1 in range(8):
            E(cvt(T + 2 * s1, CI + s1, CI + 8 + s1))
        for s1 in range(8):
            E(cvt(T + 2 * s1 + 1, CI + 16 + s1, CI + 24 + s1), f"buffer_store_dwordx2 {v(T+2*s1,2)}, v3, {s(SOUT,4)}, {s(sT0)} offen")
            if s1 < 7: E(f"s_add_u32 {s(sT0)}, {s(sT0)}, {1<<19}")
        Lx = self.label("nopub")
        E(f"s_or_b32 {s(sT0)}, s2, {s(sW)}", f"s_cmp_lg_u32 {s(sT0)}, 0", f"s_cbranch_scc1 {Lx}", "s_mov_b64 exec, 1",
          f"buffer_store_dword {v(VTV)}, off, {s(SWS,4)}, 0", "s_mov_b64 exec, -1", f"{Lx}:")
        self.stamp(9)
        self.stamp_out(10)
        E("s_endpgm")

    def ya_loads(self):
        E = self.E
        E(f"s_add_u32 {s(sT3)}, {s(sB0)}, {WS_YA}")
        for cc in range(4):
            E(f"buffer_load_dwordx4 {v(self.YF+4*cc,4)}, v3, {s(SWS,4)}, {s(sT3)} offen sc1")
            if cc < 3: E(f"s_add_u32 {s(sT3)}, {s(sT3)}, 4096")

    def pathA(self):
        E = self.E; c = self.c
        BAND, TF, T32, FA, ACC, KD, UR = 10, 34, 102, 106, 146, 178, 194
        Z = 210
        RS = 528; REG = 16896
        NB, NS, Y0 = 0, 1344, 547
        FA2, FA3 = 5376, 5888
        CS, PAD, LOUT = 4640, 240, 20480
        E("LpathA:")
        E(f"s_setprio {c.prio_a}")
        sG = sS2; sCH = sKAP
        E(f"s_sub_u32 {s(sG)}, s2, 256", f"s_lshr_b32 {s(sT0)}, {s(sG)}, 2", f"s_lshl_b32 {s(sT0)}, {s(sT0)}, 4", f"s_and_b32 {s(sT1)}, {s(sG)}, 3", f"s_add_u32 {s(sT0)}, {s(sT0)}, {s(sT1)}",
          f"s_lshl_b32 {s(sT1)}, {s(sW)}, 2", f"s_add_u32 {s(sCH)}, {s(sT0)}, {s(sT1)}", f"s_lshl_b32 {s(sT0)}, {s(sCH)}, 8", f"s_lshl_b32 {s(sT1)}, {s(sCH)}, 1",
          f"v_lshl_add_u32 v3, v1, 2, {s(sT0)}", f"v_mov_b32 v4, {s(sT1)}")
        E("s_waitcnt lgkmcnt(0)")
        PR = Z
        E(f"global_load_ushort {v(PR+4)}, v4, {s(sLDT,2)}", f"global_load_dword {v(PR)}, v3, {s(sLAR,2)}", f"global_load_dword {v(PR+1)}, v3, {s(sAIM,2)}",
          f"global_load_dword {v(PR+2)}, v3, {s(sCRE,2)}", f"global_load_dword {v(PR+3)}, v3, {s(sCIM,2)}")
        E(f"s_load_dword {s(sTV)}, {s(sWSp,2)}, 0")
        self.code_prefetch(4, 255)
        self.srd(SWS, sWSp, WS_BYTES)
        E("v_and_b32 v2, 15, v1", "v_lshrrev_b32 v4, 4, v1", "v_lshlrev_b32 v4, 3, v4", "v_sub_u32 v2, v2, v4")
        E(f"s_mov_b32 {s(sT1)}, 0")
        bands = [(11, 3), (6, 5), (3, 3), (6, 5), (5, 7), (4, 9), (12, 2)]
        for k, (cst, ln) in enumerate(bands):
            dst = BAND + 4 * k if k < 6 else T32
            E(f"s_movk_i32 {s(sT0)}, {(1<<ln)-1}", f"v_add_u32 v4, {cst+32}, v2", f"v_lshlrev_b64 v[6:7], v4, {s(sT0,2)}", f"s_movk_i32 {s(sT2)}, {0x3f80}" if k < 6 else f"s_mov_b32 {s(sT2)}, 0xffff")
            for m in range(4):
                E(f"v_bfe_u32 v5, v7, {2*m}, 2", "v_lshl_or_b32 v5, v5, 15, v5", f"v_and_b32 v5, {TAGM}, v5", f"v_mul_u32_u24 {v(dst+m)}, {s(sT2)}, v5")
        E(f"s_mul_i32 {s(sB0)}, {s(sW)}, {REG}", f"v_lshl_add_u32 v3, v1, 3, {s(sB0)}", "v_and_b32 v5, 31, v1", f"v_mul_u32_u24 v4, {RS}, v5", "v_lshrrev_b32 v6, 5, v1",
          "v_lshl_add_u32 v4, v6, 4, v4", f"v_add_u32 v4, {s(sB0)}, v4")
        E("s_waitcnt lgkmcnt(0)")
        self.nonce()
        self.stamp(1)
        E("s_waitcnt vmcnt(2)")
        self.stamp(2)
        DT = Z + 5
        E(f"v_lshlrev_b32 {v(DT)}, 16, {v(PR+4)}", f"v_mul_f32 {v(DT)}, {hex_f(LOG2E)}, {v(DT)}", f"v_exp_f32 {v(DT)}, {v(DT)}")
        AL_, BE, CC = Z + 6, Z + 8, Z + 10
        unp = lambda d, r, hi: f"v_and_b32 {v(d)}, 0xffff0000, {v(r)}" if hi else f"v_lshlrev_b32 {v(d)}, 16, {v(r)}"
        for e in range(2):
            E(unp(AL_ + e, PR, e), f"v_mul_f32 {v(AL_+e)}, {hex_f(LOG2E)}, {v(AL_+e)}", f"v_exp_f32 {v(AL_+e)}, {v(AL_+e)}", unp(BE + e, PR + 1, e), unp(CC + 2 * e, PR + 2, e), unp(CC + 2 * e + 1, PR + 3, e))
        E(cvt(DT, DT, DT), cvt(PR, AL_, AL_ + 1), f"v_lshlrev_b32 {v(DT)}, 16, {v(DT)}")
        for e in range(2):
            E(unp(AL_ + e, PR, e), f"v_mul_f32 {v(AL_+e)}, {v(AL_+e)}, {v(DT)}", f"v_mul_f32 {v(AL_+e)}, {hex_f(-LOG2E)}, {v(AL_+e)}",
              f"v_mul_f32 {v(BE+e)}, {v(BE+e)}, {v(DT)}", f"v_mul_f32 {v(BE+e)}, 0.15915494, {v(BE+e)}")
        E(f"v_add_f32 {v(DT)}, {v(DT)}, {v(DT)}")
        for k in range(4):
            E(f"v_mul_f32 {v(CC+k)}, {v(CC+k)}, {v(DT)}")
        ZP = {1: Z + 14, 8: Z + 18, 128: Z + 22, 256: Z + 26}
        t = Z + 30
        for p, d in ZP.items():
            for e in range(2):
                E(f"v_mul_f32 {v(t+2*e)}, {lit(float(p))}, {v(AL_+e)}", f"v_mul_f32 {v(t+2*e+1)}, {lit(float(p))}, {v(BE+e)}",
                  f"v_exp_f32 {v(t+2*e)}, {v(t+2*e)}", f"v_fract_f32 {v(t+2*e+1)}, {v(t+2*e+1)}")
            for e in range(2):
                E(f"v_cos_f32 {v(d+2*e)}, {v(t+2*e+1)}", f"v_sin_f32 {v(d+2*e+1)}, {v(t+2*e+1)}")
            for e in range(2):
                E(f"v_mul_f32 {v(d+2*e)}, {v(d+2*e)}, {v(t+2*e)}", f"v_mul_f32 {v(d+2*e+1)}, {v(d+2*e+1)}, {v(t+2*e)}")
        Z2, Z4 = Z + 34, Z + 38
        def cmul(dst, a, m, tmp):
            o = []
            for e in range(2):
                o.append(f"v_pk_mul_f32 {v(tmp+2*e,2)}, {v(a+2*e,2)}, {v(m+2*e,2)} op_sel_hi:[1,0]")
            for e in range(2):
                o.append(f"v_pk_fma_f32 {v(dst+2*e,2)}, {v(a+2*e,2)}, {v(m+2*e,2)}, {v(tmp+2*e,2)} op_sel:[1,1,0] op_sel_hi:[0,1,1] neg_lo:[1,0,0]")
            return o
        def put(row, a, neg, pk):
            return [cvt(pk, a, a + 1, False, neg), cvt(pk + 1, a + 2, a + 3, False, neg), f"ds_write_b64 v3, {v(pk,2)} offset:{RS*row}"]
        W0 = FA
        tA, tB, pA, pB = W0, W0 + 4, W0 + 8, W0 + 10
        gA, gB, gC = W0 + 12, W0 + 16, W0 + 20
        E(cmul(Z2, ZP[1], ZP[1], tA), cmul(Z4, Z2, Z2, tB))
        sA = put(0, CC, True, pA)
        src = CC
        for i in range(1, 8):
            sA += cmul(gA, src, ZP[1], tA) + put(i, gA, True, pA); src = gA
        sA += []
        sB = cmul(gB, CC, ZP[256], tB) + put(8, gB, True, pB)
        src = gB
        for i in range(1, 4):
            sB += cmul(gC, src, Z2, tB) + put(8 + i, gC, True, pB); src = gC
        sB += cmul(gB, gB, ZP[256], tB) + put(12, gB, True, pB) + cmul(gC, gB, Z4, tB) + put(13, gC, True, pB)
        sB += cmul(gB, gB, ZP[256], tB) + put(14, gB, True, pB)
        E(interleave(sA, sB))
        sA = cmul(gC, gB, Z4, tA) + put(15, gC, True, pA)
        sB = []
        for i in range(5):
            sB += cmul(gB if i else gA, gB if i == 0 else (gA if i == 1 else gB), ZP[256], tB) + put(16 + i, gB if i else gA, True, pB)
        E(interleave(sA, sB[:14]), sB[14:])
        AF = TF
        for k in range(16):
            E(f"ds_read_b128 {v(AF+4*k,4)}, v4 offset:{32*k}")
        E(f"v_mov_b32 {v(pA)}, 0x3f80", f"v_mov_b32 {v(pA+1)}, 0x3f80", f"ds_write_b64 v3, {v(pA,2)}")
        sA = put(1, ZP[8], False, pA); src = ZP[8]
        for j in range(2, 16):
            sA += cmul(gA, src, ZP[8], tA) + put(j, gA, False, pA); src = gA
        sB = put(16, ZP[128], False, pB); src = ZP[128]
        for j in range(17, 32):
            sB += cmul(gB, src, ZP[8], tB) + put(j, gB, False, pB); src = gB
        E(interleave(sA, sB))
        BF = FA + 24
        for k in range(8):
            E(f"ds_read_b128 {v(BF+4*k,4)}, v4 offset:{32*k}")
        for k in range(16):
            E(f"s_waitcnt lgkmcnt({7 if k < 9 else 15-k})")
            E(mf32(KD, AF + 4 * k, BF + 4 * (k & 7), "0" if k == 0 else None))
            if k < 8:
                E(f"ds_read_b128 {v(BF+4*k,4)}, v4 offset:{32*(k+8)}")
        for k in range(4):
            E(f"v_mov_b32 {v(Z+k)}, 0")
        E(f"v_lshl_add_u32 v5, v1, 4, {s(sB0)}")
        for k in range(7):
            E(f"ds_write_b128 v5, {v(Z,4)} offset:{1024*k}")
        E("v_and_b32 v5, 31, v1", "v_lshrrev_b32 v6, 5, v1", f"v_lshlrev_b32 v7, 4, v5", f"v_sub_u32 v7, {s(sB0)}, v7")
        E(f"v_lshlrev_b32 v8, 3, v6", "v_sub_u32 v8, v7, v8")
        E(f"v_add_u32 v7, 528, v7", "v_add_u32 v8, 528, v8")
        E(f"v_lshl_add_u32 {v(Z+4)}, v5, 2, {s(sB0)}", f"v_lshl_add_u32 {v(Z+5)}, v5, 1, {s(sB0)}")
        K = lambda a_, b_: KD + 4 * a_ + b_
        q = Z + 8
        E(cvt(q, K(1, 3), K(1, 2)), cvt(q + 1, K(1, 2), K(1, 2)), cvt(q + 2, K(1, 1), K(1, 0)), cvt(q + 3, K(1, 0), K(1, 0)), cvt(q + 4, K(1, 2), K(1, 1)))
        E(cvt(q + 6, K(2, 0), K(2, 1)), cvt(q + 7, K(2, 2), K(2, 3)))
        E(cvt(q + 8, K(0, 3), K(0, 2)), cvt(q + 9, K(0, 1), K(0, 0)), cvt(q + 10, K(0, 2), K(0, 1)))
        E(f"v_readlane_b32 {s(sT0)}, {v(q+6)}, 0")
        off = lambda cp, y: NB + cp * NS + 2 * (y + cp) - 528
        E("s_mov_b32 exec_lo, -1", "s_mov_b32 exec_hi, 0")
        y = Y0 - 262
        E(f"ds_write_b128 v7, {v(q,4)} offset:{off(3,y)}")
        for k in range(4):
            E(f"ds_write_b32 v7, {v(q+k)} offset:{off(1,y)+4*k}")
        for cp in (0, 2):
            o = off(cp, y)
            E(f"ds_write_b16 v7, {v(q)} offset:{o}", f"ds_write_b32 v7, {v(q+1)} offset:{o+2}", f"ds_write_b32 v7, {v(q+4)} offset:{o+6}", f"ds_write_b32 v7, {v(q+3)} offset:{o+10}",
              f"ds_write_b16 v7, {v(q+3)} offset:{o+14}")
        for b_ in range(4):
            op = "ds_write_b16_d16_hi" if b_ & 1 else "ds_write_b16"
            E(f"{op} {v(Z+5)}, {v(q+6+(b_>>1))} offset:{FA3 + 2*(32*b_+29)}")
        E("s_mov_b64 exec, 1")
        E(f"ds_write_b16 {v(Z+5)}, {v(Z)} offset:{FA3 + 2*29}", f"ds_write_b16 {v(Z+5)}, {v(q+6)} offset:{FA2 + 2*(128+59)}")
        E("s_mov_b32 exec_lo, 0", "s_mov_b32 exec_hi, -1")
        E(f"ds_write_b16_d16_hi {v(Z+4)}, {v(q+2)} offset:{FA2 + 2*59}", f"ds_write_b16 {v(Z+4)}, {v(q+2)} offset:{FA2 + 2*60}",
          f"ds_write_b16_d16_hi {v(Z+4)}, {v(q)} offset:{FA2 + 2*(64+59)}", f"ds_write_b16 {v(Z+4)}, {v(q)} offset:{FA2 + 2*(64+60)}")
        E("s_mov_b32 exec_hi, 1")
        E(f"ds_write_b16 {v(Z+4)}, {v(Z)} offset:{FA2 + 2*59}", f"ds_write_b16 {v(Z+4)}, {v(q+6)} offset:{FA3 + 2*(128+29)}")
        y = Y0 - 514
        for cp in range(4):
            o = off(cp, y) + 528; ad = v(Z + 4)
            if (y + cp) % 2 == 0:
                E(f"ds_write_b32 {ad}, {v(q+3)} offset:{o}", f"ds_write_b32 {ad}, {v(q+3)} offset:{o+4}")
            else:
                E(f"ds_write_b16 {ad}, {v(q+3)} offset:{o}", f"ds_write_b32 {ad}, {v(q+3)} offset:{o+2}", f"ds_write_b16 {ad}, {v(q+3)} offset:{o+6}")
        E("s_mov_b64 exec, -1")
        y = Y0 - 3
        E(f"ds_write_b64 v8, {v(q+8,2)} offset:{off(0,y)}", f"ds_write_b32 v8, {v(q+8)} offset:{off(2,y)}", f"ds_write_b32 v8, {v(q+9)} offset:{off(2,y)+4}")
        for cp in (1, 3):
            o = off(cp, y)
            E(f"ds_write_b16 v8, {v(q+8)} offset:{o}", f"ds_write_b32 v8, {v(q+10)} offset:{o+2}", f"ds_write_b16_d16_hi v8, {v(q+9)} offset:{o+6}")
        E(f"s_and_b32 {s(sT0)}, {s(sT0)}, 0xffff", f"s_mul_i32 {s(sT0)}, {s(sT0)}, {TAGM}")
        for m in range(4):
            E(f"v_and_b32 {v(T32+m)}, {s(sT0)}, {v(T32+m)}")
        E("v_and_b32 v5, 15, v1", f"v_add_u32 v5, {(4 - Y0 % 4) % 4}, v5", "v_and_b32 v5, 3, v5", f"v_mul_u32_u24 v5, {NS+2}, v5", "v_lshlrev_b32 v6, 1, v2", "v_sub_u32 v5, v5, v6",
          f"s_add_u32 {s(sT1)}, {s(sB0)}, {NB + 2*(Y0-16-512)}", f"v_add_u32 v5, {s(sT1)}, v5")
        for s_ in range(17):
            E(f"ds_read_b64 {v(TF+4*s_,2)}, v5 offset:{64*(16-s_)}", f"ds_read_b64 {v(TF+4*s_+2,2)}, v5 offset:{64*(16-s_)+8}")
        E("v_and_b32 v5, 15, v1", "v_lshrrev_b32 v6, 4, v1", "v_lshlrev_b32 v6, 2, v6", "v_sub_u32 v5, v5, v6", "v_add_u32 v5, 12, v5",
          f"s_add_u32 {s(sT1)}, {s(sB0)}, {FA2}", f"v_lshl_add_u32 v6, v5, 3, {s(sT1)}", f"s_add_u32 {s(sT1)}, {s(sB0)}, {FA3}", f"v_lshl_add_u32 v5, v5, 2, {s(sT1)}")
        FA2f = lambda dl, pr: FA + 8 * (dl - 2) + 4 * pr
        FA3f = lambda dl: FA + 24 + 4 * (dl - 4)
        for dl in (2, 3, 4):
            for pr in range(2):
                o = lambda r: 32 * (dl - 2) + 2 * (3 - r) + pr
                E(f"ds_read2_b32 {v(FA2f(dl,pr),2)}, v6 offset0:{o(0)} offset1:{o(1)}", f"ds_read2_b32 {v(FA2f(dl,pr)+2,2)}, v6 offset0:{o(2)} offset1:{o(3)}")
        for dl in (4, 5, 6, 7):
            o = lambda r: 16 * (dl - 4) + (3 - r)
            E(f"ds_read2_b32 {v(FA3f(dl),2)}, v5 offset0:{o(0)} offset1:{o(1)}", f"ds_read2_b32 {v(FA3f(dl)+2,2)}, v5 offset0:{o(2)} offset1:{o(3)}")
        E("v_lshrrev_b32 v7, 2, v0", "v_and_b32 v8, 3, v0", "v_lshlrev_b32 v3, 8, v7", "v_lshl_add_u32 v3, v8, 4, v3", f"v_mul_u32_u24 v4, {CS}, v8", "v_lshl_add_u32 v4, v7, 3, v4",
          f"s_lshl_b32 {s(sT0)}, {s(sG)}, 14", f"s_add_u32 {s(sT0)}, {s(sT0)}, {WS_UT}", f"s_mul_i32 {s(sB1)}, {s(sW)}, {CS}")
        E("s_waitcnt lgkmcnt(0)", "s_barrier")
        E(f"v_lshl_add_u32 v6, v1, 3, {s(sB1)}", "s_mov_b32 exec_hi, 0x0fffffff", f"ds_write_b64 v6, {v(Z,2)}", "s_mov_b32 exec_hi, -1")
        self.stamp(3)
        LD = KD
        self.poll([f"buffer_load_dwordx4 {v(LD+4*r,4)}, v3, {s(SWS,4)}, {s(sT0)} offen offset:{64*r} sc1" for r in range(4)], list(range(LD, LD + 16)))
        self.stamp(4)
        for s1 in range(8):
            t = Z + 8 + 2 * (s1 & 3); k = s1 >> 1; sel = s(sSELHI if s1 & 1 else sSELLO)
            E(f"v_perm_b32 {v(t)}, {v(LD+4+k)}, {v(LD+k)}, {sel}", f"v_perm_b32 {v(t+1)}, {v(LD+12+k)}, {v(LD+8+k)}, {sel}", f"ds_write_b64 v4, {v(t,2)} offset:{2*PAD + 512*s1}")
        E("v_and_b32 v7, 15, v1", "v_lshrrev_b32 v8, 4, v1", "v_lshlrev_b32 v5, 5, v7", "v_lshl_add_u32 v5, v8, 4, v5", f"v_add_u32 v5, {s(sB1)}, v5")
        E("v_lshlrev_b32 v6, 12, v8", "v_lshl_add_u32 v6, v7, 6, v6", "v_bfe_u32 v7, v1, 1, 2", f"v_xor_b32 v7, {s(sW)}, v7", "v_lshl_add_u32 v6, v7, 4, v6")
        E("s_waitcnt lgkmcnt(0)", "s_barrier")
        self.stamp(5)
        NR = 4
        uoff = lambda sg: 2 * (PAD - 16 + 32 * sg)
        reads = []
        work = []
        SD = KD
        SB = Z + 16
        W24 = Z + 28
        started = set()
        def acc(I, a_, b_):
            first = I not in started
            started.add(I)
            return mf16(ACC + 4 * I, a_, b_, "0" if first else None)
        seq = list(range(-7, 57))
        prog = []
        nread = [0]
        def rd(dst, off_):
            nread[0] += 1
            return f"ds_read_b128 {v(dst,4)}, v5 offset:{off_}"
        order = []
        for sg in seq:
            order.append(("U", sg))
            if sg % 8 == 0 and 0 <= sg <= 40:
                order.append(("W", sg // 8))
        ring = {}
        slot = 0
        dsts = []
        for kind, k in order:
            if kind == "U":
                dsts.append(UR + 4 * (slot % NR)); slot += 1
            else:
                dsts.append(W24)
        def issue(i):
            kind, k = order[i]
            return rd(dsts[i], uoff(k) if kind == "U" else 2 * (PAD - 24 + 256 * k))
        nxt = 0
        def pump(i, out):
            nonlocal nxt
            while nxt < len(order) and nxt <= i + NR - 1:
                busy = any(dsts[j] == dsts[nxt] for j in range(i, nxt))
                if busy: break
                out.append(issue(nxt)); nxt += 1
        deferred = []
        for i, (kind, k) in enumerate(order):
            o = []
            pump(i, o)
            E(o)
            E(f"s_waitcnt lgkmcnt({nxt - i - 1})")
            u = dsts[i]
            if kind == "U":
                sg = k
                if sg % 8 == 0 and 0 <= sg <= 40:
                    blk = sg // 8
                    E(mf16(SD, u, BAND, "0"), mf16(SD + 4, u, BAND + 4, "0"), mf16(SD + 8, u, BAND + 8, "0"))
                    if blk <= 3: E(mf16(Z + 32, u, BAND + 16, "0"))
                for I in range(8):
                    s_ = 8 * I - sg
                    if 0 <= s_ <= 16: E(acc(I, u, TF + 4 * s_))
                if sg in (0, 8, 16, 24): E(acc(sg // 8 + 4, u, T32))
            else:
                blk = k
                E(mf16(SD + 12, u, BAND + 12, "0"))
                if blk <= 3: E(mf16(Z + 36, u, BAND + 20, "0"))
                pk1 = [cvt(SB + r, SD + r, SD + 4 + r) for r in range(4)]
                pk2 = [cvt(SB + 4 + r, SD + 8 + r, SD + 12 + r) for r in range(4)]
                if blk <= 3: pk2 += [cvt(SB + 8 + r, Z + 32 + r, Z + 36 + r) for r in range(4)]
                deferred.append([1, pk1]); deferred.append([2, pk2]); deferred.append([3, ("cons", blk)])
            nd = []
            for d in deferred:
                if d[0] == 0:
                    if isinstance(d[1], tuple):
                        blk = d[1][1]
                        for dl in (2, 3, 4):
                            if blk + dl <= 7:
                                E(acc(blk + dl, FA2f(dl, 0), SB), acc(blk + dl, FA2f(dl, 1), SB + 4))
                        if blk <= 3:
                            for dl in (4, 5, 6, 7):
                                if blk + dl <= 7: E(acc(blk + dl, FA3f(dl), SB + 8))
                    else:
                        E(d[1])
                else:
                    d[0] -= 1; nd.append(d)
            deferred = nd
        assert not deferred
        self.stamp(6)
        E("v_lshrrev_b32 v3, 2, v0", "v_lshlrev_b32 v3, 14, v3", "v_and_b32 v7, 3, v0", "v_lshl_add_u32 v3, v7, 4, v3",
          "v_bfe_u32 v4, v0, 3, 2", "v_lshlrev_b32 v4, 4, v4", "v_lshlrev_b32 v7, 4, v0", "v_xor_b32 v4, v7, v4")
        E(f"s_and_b32 {s(sT0)}, {s(sG)}, 3", f"s_lshl_b32 {s(sT0)}, {s(sT0)}, 12", f"s_lshr_b32 {s(sT1)}, {s(sG)}, 2", f"s_lshl_b32 {s(sT1)}, {s(sT1)}, 6",
          f"s_add_u32 {s(sT0)}, {s(sT0)}, {s(sT1)}", f"s_add_u32 {s(sT0)}, {s(sT0)}, {WS_YA}")
        for r in range(4):
            for m in range(4):
                t = TF + 4 * r + m
                E(cvt(t, ACC + 8 * m + r, ACC + 8 * m + 4 + r), tag(t, t))
            E(f"ds_write_b128 v6, {v(TF+4*r,4)} offset:{LOUT + 1024*r}")
        E("s_waitcnt lgkmcnt(0)", "s_barrier")
        for r in range(4):
            E(f"ds_read_b128 {v(TF+16+4*r,4)}, v4 offset:{LOUT + 4096*r}")
        for r in range(4):
            E(f"s_waitcnt lgkmcnt({3-r})", f"buffer_store_dwordx4 {v(TF+16+4*r,4)}, v3, {s(SWS,4)}, {s(sT0)} offen sc1")
            if r < 3: E(f"s_add_u32 {s(sT0)}, {s(sT0)}, {1<<20}")
        self.stamp(7)
        self.stamp_out(8)
        E("Lend:", "s_endpgm")

    def build(self, header):
        self.entry()
        self.pathB()
        self.pathA()
        body = self.a.text()
        out = header + f"; @launch grid=(512,1,1) block=(256,1,1) lds={LDS_BYTES}\n"
        out += '.amdgcn_target "amdgcn-amd-amdhsa--gfx950"\n.text\n' + body
        out += f'''.p2align 8
.fill 4096, 8, 0
.section .rodata,"a"
.p2align 6
.amdhsa_kernel {KNAME}
  .amdhsa_next_free_vgpr 256
  .amdhsa_next_free_sgpr 102
  .amdhsa_accum_offset 256
  .amdhsa_group_segment_fixed_size 0
  .amdhsa_kernarg_size 112
  .amdhsa_user_sgpr_count 2
  .amdhsa_user_sgpr_kernarg_segment_ptr 1
  .amdhsa_system_sgpr_workgroup_id_x 1
.end_amdhsa_kernel
'''
        return out

def main():
    import argparse
    ap = argparse.ArgumentParser()
    ap.add_argument("out")
    ap.add_argument("opts", nargs="*")
    a = ap.parse_args()
    cfg = Cfg()
    for o in a.opts:
        k, val = o.split("=")
        assert hasattr(cfg, k), k
        setattr(cfg, k, int(val, 0))
    ref = open(os.path.join(os.path.dirname(os.path.abspath(__file__)), "..", "cdna_kernels", KNAME[:-7] + ".s.ref")).read()
    header = "".join(l + "\n" for l in ref.splitlines() if l.startswith(";") and "@launch" not in l)
    g = Gen(cfg)
    txt = g.build(header)
    open(a.out, "w").write(txt)
    print("instructions", g.a.count, "auto nops", g.a.nops)

if __name__ == "__main__":
    main()
```

```python
import subprocess, sys
def mk(out, name, mode, opts):
    subprocess.run(["python3", "gen/gen.py", "z.s", "stamps=1", f"sel=start,{name}"] + opts, check=True, capture_output=True)
    t = open("z.s").read()
    a = "    s_memrealtime s[84:85]\n"
    st = a + "    s_waitcnt lgkmcnt(0)\n    v_mov_b32 v252, s82\n    v_mov_b32 v253, s84\n    s_lshl_b32 s96, s2, 5\n    s_lshl_b32 s97, s56, 3\n    s_add_u32 s96, s96, s97\n    s_add_u32 s96, s96, 0x1400000\n    s_mov_b64 exec, 1\n    buffer_store_dwordx2 v[252:253], off, s[40:43], s96 sc1\n    s_mov_b64 exec, -1\n"
    t = t.replace(a, st)
    a = "    buffer_store_dword v9, off, s[40:43], 0\n"
    assert t.count(a) == 1
    code = "    s_mov_b64 exec, -1\n    s_waitcnt vmcnt(0)\n    s_sleep 100\n    s_sleep 100\n    v_lshlrev_b32 v10, 7, v1\n    s_mov_b32 s96, 0x1400000\n"
    for k in range(4):
        code += f"    buffer_load_dwordx2 v[{12+2*k}:{13+2*k}], v10, s[40:43], s96 offen offset:{32*k} sc1\n"
    code += "    s_waitcnt vmcnt(0)\n"
    code += "    v_min_u32 v20, v12, v14\n    v_min_u32 v20, v20, v16\n    v_min_u32 v20, v20, v18\n    v_max_u32 v21, v12, v14\n    v_max_u32 v21, v21, v16\n    v_max_u32 v21, v21, v18\n"
    code += "    v_max_u32 v22, v13, v15\n    v_max_u32 v22, v22, v17\n    v_max_u32 v22, v22, v19\n    s_mov_b32 s90, -1\n    s_mov_b32 s91, 0\n    s_mov_b32 s98, 0\n    s_mov_b32 s97, 0\n"
    code += "Lred:\n    s_nop 4\n    v_readlane_b32 s96, v20, s97\n    s_nop 1\n    s_min_u32 s90, s90, s96\n    v_readlane_b32 s96, v21, s97\n    s_nop 1\n    s_max_u32 s91, s91, s96\n    v_readlane_b32 s96, v22, s97\n    s_nop 1\n    s_max_u32 s98, s98, s96\n    s_add_u32 s97, s97, 1\n    s_cmp_lt_u32 s97, 64\n    s_cbranch_scc1 Lred\n"
    code += "    s_sub_u32 s95, %s, s90\n" % ("s91" if mode == "skew" else "s98")
    code += "    s_min_u32 s95, s95, 3000\n    s_mul_i32 s95, s95, 4\n    s_add_u32 s95, s95, 3000\nLspin:\n    s_memrealtime s[92:93]\n    s_waitcnt lgkmcnt(0)\n    s_sub_u32 s94, s92, s90\n    s_cmp_lt_u32 s94, s95\n    s_cbranch_scc1 Lspin\n    s_mov_b64 exec, 1\n"
    t = t.replace(a, a + code)
    open(out, "w").write(t)
mk("exp/m0.s", "b_x", "skew", [])
mk("exp/m1.s", "b_x", "max", [])
mk("exp/m2.s", "b_oku", "max", [])
mk("exp/m3.s", "b_w1", "max", [])
mk("exp/m4.s", "b_2end", "max", [])
mk("exp/m5.s", "b_3bar", "max", [])
```
